```python
import torch

def _softmax(x, axis=-1):
    return torch.softmax(x, dim=axis)
def _gelu(x):
    return torch.nn.functional.gelu(x, approximate="tanh")
def _silu(x):
    return torch.nn.functional.silu(x)
def _sigmoid(x):
    return torch.sigmoid(x)
def _layernorm(x, axis=-1, eps=1e-5):
    m = x.mean(dim=axis, keepdim=True)
    v = x.var(dim=axis, keepdim=True, unbiased=False)
    return (x - m) / torch.sqrt(v + eps)
def _scatter_add(tgt, idx, src, axis=0):
    return tgt.clone().index_add_(axis, idx, src)
def _segment_sum(src, seg, n):
    out = torch.zeros((n,) + src.shape[1:], dtype=src.dtype)
    return out.index_add_(0, seg, src)
def _pad(x, pw):
    flat = tuple(v for pair in reversed(pw) for v in pair)
    return torch.nn.functional.pad(x, flat)

kernel_name = 'standalone__mha_softmax__near_ridge'

def setup_inputs():

    _w = (lambda a: (lambda t: t.to(torch.bfloat16) if t.is_floating_point() else t)(torch.as_tensor(a)))
    B, H, Sq, Sk, D = 16, 32, 768, 512, 128
    return {
        "q": _w((lambda *s: torch.randn(*s, dtype=torch.bfloat16) * 0.8)(B, H, Sq, D)),
        "k": _w((lambda *s: torch.randn(*s, dtype=torch.bfloat16) * 0.8)(B, H, Sk, D)),
        "v": _w((lambda *s: torch.randn(*s, dtype=torch.bfloat16) * 0.05)(B, H, Sk, D)),
    }

def reference(q, k, v):
    scale = q.shape[-1] ** -0.5
    scores = torch.einsum("bhqd,bhkd->bhqk", q, k) * scale
    p = _softmax(scores, axis=-1)
    return torch.einsum("bhqk,bhkd->bhqd", p, v)
```

```python
import re
from collections import defaultdict

REG_RE = re.compile(r'\b([vas])\[(\d+):(\d+)\]|\b([vas])(\d+)\b|\b(vcc|m0|exec|scc)\b')
TRANS = ('v_exp_f32', 'v_rcp_f32', 'v_log_f32', 'v_rsq_f32', 'v_sqrt_f32')

def regs_of(tok):
    out = []
    for m in REG_RE.finditer(tok):
        if m.group(1):
            out += [f"{m.group(1)}{i}" for i in range(int(m.group(2)), int(m.group(3)) + 1)]
        elif m.group(4):
            out.append(f"{m.group(4)}{m.group(5)}")
        else:
            out.append(m.group(6))
    return out

def split_ops(s):
    ops, depth, cur = [], 0, ''
    for ch in s:
        if ch == '[': depth += 1
        if ch == ']': depth -= 1
        if ch == ',' and depth == 0:
            ops.append(cur.strip()); cur = ''
        else:
            cur += ch
    if cur.strip(): ops.append(cur.strip())
    return ops

class I:
    __slots__ = ('text', 'mn', 'kind', 'rd', 'wr', 'cost', 'tag', 'waits', 'passes', 'srcc', 'ab',
                 'after', 'idx', 'pin', 'prio', 'preds', 'succs', 'asap', 'alap', 'gap', 'note', 'lat', 'mingap', 'maxgap', 'grp', 'glue')
    def __init__(self, text, tag=None, waits=None, after=(), pin=False, cost=None, note=None, mingap=None, maxgap=None, grp=None, glue=False):
        self.text = text
        self.tag = tag
        self.waits = waits
        self.after = list(after)
        self.pin = pin
        self.note = note
        self.mingap = mingap
        self.maxgap = maxgap
        self.grp = grp
        self.glue = glue
        self.lat = None
        parts = text.split(None, 1)
        mn = parts[0]
        self.mn = mn
        ops = split_ops(parts[1]) if len(parts) > 1 else []
        rd, wr = [], []
        self.passes = 0; self.srcc = []; self.ab = []
        if mn.endswith(':'):
            self.kind = 'label'
        elif mn.startswith('v_mfma'):
            self.kind = 'mfma'
            self.passes = 4 if '16x16x32' in mn else 8
            wr = regs_of(ops[0]); self.ab = regs_of(ops[1]) + regs_of(ops[2]); self.srcc = regs_of(ops[3])
            rd = self.ab + self.srcc
        elif mn.startswith('v_cmp'):
            self.kind = 'valu'
            wr = regs_of(ops[0]); rd = sum((regs_of(o) for o in ops[1:]), [])
        elif mn.startswith('v_permlane') and 'swap' in mn:
            self.kind = 'valu'
            wr = regs_of(ops[0]) + regs_of(ops[1]); rd = list(wr)
        elif mn.startswith('v_'):
            self.kind = 'trans' if mn.replace('_e32', '').replace('_e64', '') in TRANS else 'valu'
            wr = regs_of(ops[0]); rd = sum((regs_of(o) for o in ops[1:]), [])
            if mn.startswith(('v_fmac', 'v_dot2c')): rd += wr
            if mn.startswith(('v_add_co', 'v_sub_co', 'v_addc_co')):
                wr += regs_of(ops[1]); rd = sum((regs_of(o) for o in ops[2:]), [])
        elif mn.startswith('ds_read'):
            self.kind = 'ldsr'
            wr = regs_of(ops[0]); rd = regs_of(ops[1])
        elif mn.startswith('ds_write'):
            self.kind = 'ldsw'
            rd = sum((regs_of(o) for o in ops), [])
        elif mn.startswith(('buffer_load', 'global_load')):
            if re.search(r'\blds\b', text) or 'load_lds' in mn:
                self.kind = 'dma'
                rd = sum((regs_of(o) for o in ops), []) + ['m0']
            else:
                self.kind = 'vload'
                wr = regs_of(ops[0]); rd = sum((regs_of(o) for o in ops[1:]), [])
        elif mn.startswith(('buffer_store', 'global_store')):
            self.kind = 'vstore'
            rd = sum((regs_of(o) for o in ops), [])
        elif mn == 's_waitcnt':
            self.kind = 'wait'
        elif mn == 's_barrier':
            self.kind = 'barrier'
        elif mn == 's_nop':
            self.kind = 'nop'
        elif mn.startswith(('s_cbranch', 's_branch', 's_endpgm')):
            self.kind = 'branch'
            if 'scc' in mn: rd = ['scc']
            if 'vcc' in mn: rd = ['vcc']
        elif mn.startswith(('s_load', 's_memtime', 's_memrealtime')):
            self.kind = 'smem'
            wr = regs_of(ops[0]); rd = sum((regs_of(o) for o in ops[1:]), [])
        elif mn.startswith('s_cmp'):
            self.kind = 'salu'
            wr = ['scc']; rd = sum((regs_of(o) for o in ops), [])
        elif mn.startswith('s_setprio'):
            self.kind = 'salu'
        elif mn.startswith('s_'):
            self.kind = 'salu'
            wr = regs_of(ops[0]); rd = sum((regs_of(o) for o in ops[1:]), [])
            if mn.startswith(('s_add', 's_sub', 's_and', 's_or', 's_xor', 's_lshl', 's_lshr', 's_andn2', 's_min', 's_max', 's_bfe', 's_not')):
                wr.append('scc')
            if mn.startswith(('s_cselect', 's_addc', 's_subb')): rd.append('scc')
            if 'saveexec' in mn: wr.append('exec'); rd.append('exec')
            if mn.startswith(('s_addk', 's_mulk')): rd += regs_of(ops[0])
        else:
            raise ValueError("unknown instruction " + text)
        self.rd = rd; self.wr = wr
        if cost is None:
            cost = {'mfma': 8, 'trans': 8, 'valu': 4, 'ldsr': 12, 'ldsw': 8, 'dma': 12, 'vload': 8, 'vstore': 12,
                    'salu': 4, 'smem': 4, 'wait': 4, 'barrier': 4, 'nop': 4, 'branch': 4, 'label': 0}[self.kind]
        self.cost = cost
    def __repr__(self): return self.text

def is_valu(i): return i.kind in ('valu', 'trans')

def required_ws(p, c):
    need = 0
    pw = set(p.wr)
    if is_valu(p):
        vw = {r for r in pw if r[0] in 'va' and r not in ('vcc',)}
        sw = {r for r in pw if r[0] == 's' or r == 'vcc'}
        if c.kind == 'mfma' and vw & set(c.rd): need = max(need, 2)
        if c.mn.startswith('v_permlane') and vw & set(c.rd): need = max(need, 2)
        if c.mn.startswith(('v_readlane', 'v_readfirstlane')) and vw & set(c.rd): need = max(need, 1)
        if 'dpp' in c.text or 'row_' in c.text or 'quad_perm' in c.text:
            if vw & set(c.rd): need = max(need, 2)
        if p.kind == 'trans' and is_valu(c) and c.kind != 'trans' and vw & set(c.rd): need = max(need, 1)
        if ('sdwa' in p.text and 'dst_sel:DWORD' not in p.text) and is_valu(c) and vw & (set(c.rd) | set(c.wr)): need = max(need, 1)
        if sw:
            if is_valu(c) and sw & set(c.rd): need = max(need, 2)
            if c.kind in ('dma', 'vload', 'vstore') and sw & set(c.rd): need = max(need, 5)
            if c.kind == 'mfma' and sw & set(c.rd): need = max(need, 2)
        if 'exec' in pw and (c.kind == 'mfma'): need = max(need, 4)
    if p.kind == 'mfma':
        n = p.passes
        far = {4: 8, 8: 12}[n]
        if c.kind == 'mfma':
            if pw & set(c.ab): need = max(need, far)
            if pw & set(c.srcc):
                if list(p.wr) == list(c.srcc) and p.passes == c.passes: pass
                else: need = max(need, {4: 6, 8: 10}[n])
            elif pw & set(c.wr):
                need = max(need, {4: 6, 8: 10}[n])
        elif is_valu(c):
            if pw & (set(c.rd) | set(c.wr)): need = max(need, far)
            if set(p.srcc) & set(c.wr): need = max(need, {4: 3, 8: 7}[n])
        elif c.kind in ('ldsr', 'ldsw', 'dma', 'vload', 'vstore'):
            if pw & (set(c.rd) | set(c.wr)): need = max(need, far)
    if p.kind == 'salu' and 'm0' in pw and c.kind == 'dma': need = max(need, 1)
    if p.kind == 'vstore' and ('x4' in p.mn or 'x3' in p.mn):
        data = set(regs_of(split_ops(p.text.split(None, 1)[1])[0]))
        if data & set(c.wr): need = max(need, 2 if is_valu(c) else 1)
    return need

def ws_of(i):
    if i.kind == 'label': return 0
    if i.kind == 'nop': return int(i.text.split()[1]) + 1
    return 1

def fix_hazards(seq, history=()):
    out = list(history)
    nh = len(out)
    nins = 0
    for c in seq:
        if c.kind in ('label', 'nop', 'wait'):
            out.append(c); continue
        dist = 0; pad = 0
        for p in reversed(out[-40:]):
            if dist >= 20: break
            need = required_ws(p, c)
            if need > dist: pad = max(pad, need - dist)
            dist += ws_of(p)
        while pad > 0:
            k = min(pad, 16)
            out.append(I(f"s_nop {k-1}")); pad -= k; nins += 1
        out.append(c)
    return out[nh:], nins

def check_hazards(seq):
    bad = []
    for n, c in enumerate(seq):
        if c.kind in ('label', 'nop', 'wait'): continue
        dist = 0
        for p in reversed(seq[max(0, n-40):n]):
            if dist >= 20: break
            need = required_ws(p, c)
            if need > dist: bad.append((p.text, c.text, need, dist))
            dist += ws_of(p)
    return bad

class WaitState:
    def __init__(self):
        self.lds = []
        self.vm = []
    def copy(self):
        w = WaitState(); w.lds = list(self.lds); w.vm = list(self.vm); return w

def needed_waits(c, st):
    lg = None; vm = None
    touched = set(c.rd) | set(c.wr)
    for k, op in enumerate(st.lds):
        if op.kind == 'ldsr' and set(op.wr) & touched:
            k2 = k
            if op.grp is not None:
                for j in range(k, len(st.lds)):
                    if st.lds[j].grp == op.grp: k2 = j
            n = len(st.lds) - 1 - k2
            lg = n if lg is None else min(lg, n)
        if op.kind == 'smem' and set(op.wr) & touched:
            lg = 0
    for k, op in enumerate(st.vm):
        hit = False
        if op.kind == 'vload' and set(op.wr) & touched: hit = True
        if c.waits and op.tag is not None and op.tag in c.waits: hit = True
        if hit:
            n = len(st.vm) - 1 - k
            vm = n if vm is None else min(vm, n)
    if c.waits and 'LDSALL' in c.waits and st.lds: lg = 0
    if lg is not None and any(o.kind == 'smem' for o in st.lds): lg = 0
    return lg, vm

def apply_wait(st, lg, vm):
    if lg is not None:
        st.lds = st.lds[len(st.lds) - lg:] if lg > 0 else []
    if vm is not None:
        st.vm = st.vm[len(st.vm) - vm:] if vm > 0 else []

WAIT_RE_L = re.compile(r'lgkmcnt\((\d+)\)'); WAIT_RE_V = re.compile(r'vmcnt\((\d+)\)')
def step_state(st, c):
    if c.kind == 'wait':
        ml = WAIT_RE_L.search(c.text); mv = WAIT_RE_V.search(c.text)
        lg = int(ml.group(1)) if ml else None; vm = int(mv.group(1)) if mv else None
        if lg is not None and lg >= len(st.lds): lg = None
        if vm is not None and vm >= len(st.vm): vm = None
        apply_wait(st, lg, vm)
    elif c.kind in ('ldsr', 'ldsw', 'smem'):
        st.lds.append(c)
    elif c.kind in ('dma', 'vload', 'vstore'):
        st.vm.append(c)

def compute_waits(seq, st):
    req = {}
    for n, c in enumerate(seq):
        if c.kind not in ('wait', 'label', 'nop'):
            lg, vm = needed_waits(c, st)
            if lg is not None or vm is not None:
                if lg is not None: lg = min(lg, 15)
                if vm is not None: vm = min(vm, 63)
                req[n] = (lg, vm)
                apply_wait(st, lg, vm)
        step_state(st, c)
    return req

def merge_req(a, b):
    out = dict(a)
    for k, (lg, vm) in b.items():
        if k in out:
            l0, v0 = out[k]
            lg = l0 if lg is None else (lg if l0 is None else min(lg, l0))
            vm = v0 if vm is None else (vm if v0 is None else min(vm, v0))
        out[k] = (lg, vm)
    return out

def insert_waits(seq, req):
    out = []
    for n, c in enumerate(seq):
        if n in req:
            lg, vm = req[n]
            t = 's_waitcnt'
            if vm is not None: t += f" vmcnt({vm})"
            if lg is not None: t += f" lgkmcnt({lg})"
            out.append(I(t))
        out.append(c)
    return out

def check_waits(seq, st):
    bad = []
    for n, c in enumerate(seq):
        if c.kind not in ('wait', 'label', 'nop'):
            lg, vm = needed_waits(c, st)
            if lg is not None or vm is not None: bad.append((n, c.text, lg, vm))
            apply_wait(st, lg, vm)
        step_state(st, c)
    return bad

class Unit:
    def __init__(self, members):
        self.members = members
        f = members[0]
        self.kind = f.kind if all(m.kind == f.kind for m in members) else members[-1].kind
        self.mn = members[-1].mn; self.text = " ; ".join(m.text for m in members)
        self.rd = sum((m.rd for m in members), []); self.wr = sum((m.wr for m in members), [])
        self.after = sum((m.after for m in members), []); self.pin = False
        self.srcc = []; self.ab = []; self.passes = 0; self.lat = f.lat
        self.mingap = f.mingap; self.maxgap = f.maxgap
        if all(m.kind == 'ldsr' for m in members): self.cost = 12 + 4 * (len(members) - 1)
        else: self.cost = sum(m.cost for m in members)
def make_units(prog):
    out = []; umap = {}
    for i in prog:
        if i.glue and out:
            prev = out[-1]
            mem = (prev.members if isinstance(prev, Unit) else [prev]) + [i]
            out[-1] = Unit(mem)
        else:
            out.append(i)
    for u in out:
        if isinstance(u, Unit):
            for m in u.members: umap[id(m)] = u
    for u in out:
        u.after = [umap.get(id(p), p) for p in u.after]
    return out

def schedule(prog, lat_lds=7, lat_mfma_valu=None, rate_scale=1.0, verbose=False, min_rate=None):
    prog = make_units(prog)
    for n, i in enumerate(prog):
        i.idx = n; i.preds = []; i.succs = []
    lastw = {}; readers = defaultdict(list)
    def edge(p, c, lat):
        if p is c: return
        c.preds.append((p, lat)); p.succs.append((c, lat))
    bb = [i for i in prog if i.kind == 'mfma' or i.pin]
    for g, i in enumerate(bb): i.gap = g
    isbb = lambda i: i.kind == 'mfma' or i.pin
    def lat_of(p, c, typ):
        if typ == 'raw':
            if p.kind == 'mfma':
                if c.kind == 'mfma' and list(p.wr) == list(c.srcc) and not (set(p.wr) & set(c.ab)): return 0
                return lat_mfma_valu if lat_mfma_valu is not None else (5 if p.passes == 4 else 4)
            if p.kind == 'ldsr': return lat_lds if True else 0
            if p.kind == 'vload': return p.lat if getattr(p, 'lat', None) else 60
            if is_valu(p) and c.kind == 'mfma': return 1
            return 0
        if typ == 'waw':
            if p.kind == 'mfma' and c.kind != 'mfma': return 5 if p.passes == 4 else 4
            return 0
        if typ == 'war':
            if p.kind == 'mfma' and is_valu(c) and set(p.srcc) & set(c.wr): return 2
            return 0
    lastlds = None; lastvm = None
    for i in prog:
        for r in i.rd:
            if r in lastw: edge(lastw[r], i, lat_of(lastw[r], i, 'raw'))
        for r in i.wr:
            if r in lastw: edge(lastw[r], i, lat_of(lastw[r], i, 'waw'))
            for q in readers[r]: edge(q, i, lat_of(q, i, 'war'))
        for p in i.after: edge(p, i, 0)
        for r in i.rd: readers[r].append(i)
        for r in i.wr:
            lastw[r] = i; readers[r] = []
    nb = len(bb)
    for i in prog:
        if isbb(i): i.asap = i.gap; continue
        a = -1
        for p, lat in i.preds:
            a = max(a, (p.gap if isbb(p) else p.asap) + lat)
        if i.mingap is not None: a = max(a, i.mingap)
        i.asap = min(a, nb - 1)
    for i in reversed(prog):
        if isbb(i): i.alap = i.gap; continue
        a = nb - 1
        for s, lat in i.succs:
            if isbb(s): a = min(a, s.gap - 1 - max(lat - 1, 0) if lat > 0 else s.gap - 1)
            else: a = min(a, s.alap - lat)
        if i.maxgap is not None: a = min(a, i.maxgap)
        i.alap = max(a, i.asap)
    fillers = [i for i in prog if not isbb(i)]
    total = sum(i.cost for i in fillers)
    rate = total / max(nb, 1) * rate_scale
    if min_rate is not None: rate = max(rate, min_rate)
    placed = set(); out = []
    import heapq
    npred = {id(i): sum(1 for p, _ in i.preds if not isbb(p)) for i in fillers}
    readyat = {id(i): max([-1] + [p.gap + lat for p, lat in i.preds if isbb(p)] + ([i.mingap] if i.mingap is not None else [])) for i in fillers}
    avail = [i for i in fillers if npred[id(i)] == 0]
    credit = 0.0
    for g in range(-1, nb):
        if g >= 0:
            out.append(bb[g])
        credit = min(credit + rate, 1.25 * rate) if g >= 0 else 0
        while True:
            cand = [i for i in avail if readyat[id(i)] <= g or i.alap <= g]
            if not cand: break
            cand.sort(key=lambda i: (i.alap, i.idx))
            i = cand[0]
            if credit <= 0 and i.alap > g and g < nb - 1: break
            avail.remove(i); out.append(i); i.gap = g; credit -= i.cost
            for s, lat in i.succs:
                if not isbb(s):
                    npred[id(s)] -= 1
                    readyat[id(s)] = max(readyat[id(s)], g + lat)
                    if npred[id(s)] == 0: avail.append(s)
    assert len(out) == len(prog), (len(out), len(prog))
    pos = {id(i): n for n, i in enumerate(out)}
    for i in prog:
        for p, _ in i.preds:
            assert pos[id(p)] < pos[id(i)], ("dep violated", p.text, i.text)
    flat = []
    for i in out:
        flat += i.members if isinstance(i, Unit) else [i]
    return flat
```

```python
import sys, struct
from fw import *

HEADER = """; Kernarg layout for this problem (48 bytes, ptrs only, base s[0:1]):
; @launch grid=(256,1,1) block=(256,1,1) lds=163840
.amdgcn_target "amdgcn-amd-amdhsa--gfx950"
.text
.globl standalone__mha_softmax__near_ridge_kernel
.p2align 8
.type standalone__mha_softmax__near_ridge_kernel,@function
standalone__mha_softmax__near_ridge_kernel:"""

KD = """.section .rodata,"a"
.p2align 6
.amdhsa_kernel standalone__mha_softmax__near_ridge_kernel
  .amdhsa_next_free_vgpr 512
  .amdhsa_next_free_sgpr 102
  .amdhsa_accum_offset 256
  .amdhsa_group_segment_fixed_size 0
  .amdhsa_kernarg_size 48
  .amdhsa_user_sgpr_count 2
  .amdhsa_user_sgpr_kernarg_segment_ptr 1
  .amdhsa_system_sgpr_workgroup_id_x 1
.end_amdhsa_kernel"""

def rng(f, b, n): return f"{f}[{b}:{b+n-1}]"
def f32(x): return "0x%08x" % struct.unpack("<I", struct.pack("<f", x))[0]
MF = "v_mfma_f32_16x16x32_bf16"

class Cfg:
    NQ = 6
    NKS = 4; NVS = 4
    NQL = 5
    KP = 1088; VP = 1032
    bar_pos = 12
    lat_lds = 8
    stamps = False
    thr = 2.0 ** 40
    rate_scale = 1.0
    epi_e15 = 1

def build(cfg):
    NQ = cfg.NQ; KP = cfg.KP; VP = cfg.VP
    KS = 8 * KP; VS = 8 * VP
    KB0 = 0; VB0 = cfg.NKS * KS; QB0 = VB0 + cfg.NVS * VS
    QB0 = (QB0 + 15) // 16 * 16
    NQL = cfg.NQL
    assert QB0 + 4 * NQL * 4096 <= 163840, QB0
    vKrd, vV0, voffK, voffV, vQrd, vOst = 1, 2, 6, 7, 8, 9
    vVrd = [2, 3, 4, 5]
    RINV = [10, 11]
    TM = [12, 13]
    NM = [14 + q for q in range(NQ)]
    TP = [20, 24]
    TA = 28
    S = [[32 + (b * NQ + q) * 8 for q in range(NQ)] for b in range(2)]
    NOV = 4
    O = [('v', 128 + 32 * q) for q in range(NOV)]
    FR = [4 * i for i in range(8)]
    Q = [32 + 16 * q for q in range(NQ)]
    ONES = 128
    LS = [132 + 4 * q for q in range(NQ)]
    O += [('a', 156 + 32 * q) for q in range(NQ - NOV)]
    QX = {q: 220 + 16 * (q - NQL) for q in range(NQL, NQ)}
    sQ, sK, sV, sO = 12, 16, 20, 24
    sWave = 30; sC = 31; sKVc = 32; sKVn = 33; sQn = 34; sOc = 35; sOp = 36; sKw = 37; sVw = 38; sQw = 39
    sT = 40; sT2 = 41; sBlk = 42; sFlag = 43; sThr = 44; sOb = 45; sOn = 46; sBit = 47
    c_scale = (128 ** -0.5) * 1.4426950408889634

    segs = {}
    pro = []
    P = lambda t, **k: (pro.append(I(t, **k)), pro[-1])[1]
    P("s_cmp_ge_u32 s2, 256"); P("s_cbranch_scc1 L_end")
    P("s_load_dwordx4 s[4:7], s[0:1], 0"); P("s_load_dwordx4 s[8:11], s[0:1], 16")
    if cfg.stamps:
        P("s_load_dwordx2 s[60:61], s[0:1], 40"); P("s_memtime s[64:65]"); P("s_memrealtime s[66:67]")
    P("v_and_b32 v32, 63, v0")
    P("v_lshrrev_b32 v33, 6, v0")
    P("v_lshrrev_b32 v34, 4, v32")
    P("v_readfirstlane_b32 s30, v33")
    P("v_and_b32 v35, 15, v32")
    P("v_xor_b32 v36, v35, v34"); P("v_lshlrev_b32 v36, 4, v36"); P(f"v_lshl_add_u32 v{voffK}, v34, 8, v36")
    P("v_lshlrev_b32 v36, 2, v34"); P("v_xor_b32 v36, v35, v36"); P("v_lshlrev_b32 v36, 4, v36"); P(f"v_lshl_add_u32 v{voffV}, v34, 8, v36")
    P("v_lshrrev_b32 v36, 2, v35")
    P("v_and_b32 v37, 3, v35")
    P("v_xor_b32 v38, v37, v34"); P("v_lshlrev_b32 v38, 4, v38"); P("v_lshl_add_u32 v38, v37, 8, v38")
    P(f"v_mul_u32_u24 v39, {KP}, v36"); P(f"v_add_u32 v{vKrd}, v39, v38")
    P("v_lshl_add_u32 v38, v36, 10, v38")
    P(f"v_mul_u32_u24 v39, {NQL*4096}, v33"); P("v_add_u32 v38, v38, v39"); P(f"v_add_u32 v{vQrd}, {QB0}, v38")
    P(f"v_mul_u32_u24 v38, {VP}, v34"); P("v_lshl_add_u32 v38, v36, 8, v38"); P("v_lshl_add_u32 v38, v37, 4, v38")
    P(f"v_add_u32 v38, {VB0}, v38")
    for e in range(4):
        P(f"v_xor_b32 v39, {e}, v36"); P(f"v_lshl_add_u32 v{vVrd[e]}, v39, 6, v38")
    P("v_lshlrev_b32 v38, 4, v34"); P(f"v_lshl_add_u32 v{vOst}, v35, 8, v38")
    P("v_mov_b32 v38, 0x3f803f80")
    for r in range(4): P(f"v_accvgpr_write_b32 a{ONES+r}, v38")
    P("s_waitcnt lgkmcnt(0)")
    for base, src, n in ((sQ, 4, 0x6000000), (sK, 6, 0x4000000), (sV, 8, 0x4000000), (sO, 10, 0x6000000)):
        P(f"s_mov_b32 s{base}, s{src}"); P(f"s_mov_b32 s{base+1}, s{src+1}")
        P(f"s_mov_b32 s{base+2}, {n}"); P(f"s_mov_b32 s{base+3}, 0x20000")
    P(f"s_mov_b32 s{sC}, {f32(c_scale)}"); P(f"s_mov_b32 s{sThr}, {f32(cfg.thr)}")
    P("s_and_b32 s4, s2, 7"); P("s_lshl_b32 s4, s4, 6"); P("s_lshr_b32 s5, s2, 4"); P("s_add_u32 s4, s4, s5")
    P("s_bfe_u32 s5, s2, 0x10003")
    P(f"s_lshl_b32 s6, s{sWave}, 11")
    P(f"s_lshl_b32 s{sKVc}, s4, 17"); P(f"s_add_u32 s{sKVc}, s{sKVc}, s6")
    P(f"s_add_u32 s{sKVn}, s{sKVc}, {16 << 17}")
    P("s_mul_i32 s6, s4, 768"); P("s_mul_i32 s7, s5, 384"); P("s_add_u32 s6, s6, s7")
    P(f"s_mul_i32 s7, s{sWave}, 96"); P("s_add_u32 s6, s6, s7"); P(f"s_lshl_b32 s{sOc}, s6, 8")
    P(f"s_mov_b32 s{sOb}, s{sOc}")
    P(f"s_add_u32 s{sQn}, s{sOc}, {16*768*256}")
    P(f"s_mul_i32 s{sKw}, s{sWave}, {2*KP}")
    P(f"s_mul_i32 s{sVw}, s{sWave}, {2*VP}"); P(f"s_add_u32 s{sVw}, s{sVw}, {VB0}")
    P(f"s_mul_i32 s{sQw}, s{sWave}, {NQL*4096}"); P(f"s_add_u32 s{sQw}, s{sQw}, {QB0}")
    P(f"s_mov_b32 s{sBlk}, 0"); P(f"s_mov_b32 s{sFlag}, 0"); P(f"s_mov_b32 s{sBit}, 1")

    def dma_kv(L, which, tile, nxt, after=()):
        srd, sw, voff, base, SZ, PIT, NS = ((sK, sKw, voffK, KB0, KS, KP, cfg.NKS) if which == 'K'
                                            else (sV, sVw, voffV, 0, VS, VP, cfg.NVS))
        gt = tile + (16 if nxt else 0)
        slot = slot_of(which, tile, nxt)
        tag = (which, tile)
        a = list(after)
        L.append(I(f"s_add_u32 s{sT}, s{sKVn if nxt else sKVc}, {tile*8192}", after=a))
        L.append(I(f"s_add_u32 m0, s{sw}, {base + slot*SZ}", after=a))
        L.append(I(f"buffer_load_dwordx4 v{voff}, s[{srd}:{srd+3}], s{sT} offen lds", tag=tag, after=a))
        L.append(I(f"s_add_u32 m0, s{sw}, {base + slot*SZ + PIT - 1024}", after=a))
        L.append(I(f"buffer_load_dwordx4 v{voff}, s[{srd}:{srd+3}], s{sT} offen offset:1024 lds", tag=tag, after=a))
    def slot_of(which, tile, nxt=False):
        return tile % (cfg.NKS if which == 'K' else cfg.NVS)
    def dma_q(L, grp, sbase, after=(), direct=False, **kw):
        a = list(after)
        L.append(I(f"s_add_u32 s{sT2}, s{sbase}, {grp*4096}", after=a, **kw))
        if grp >= NQL:
            dst = Q[grp] if direct else QX[grp]
            for j in range(4):
                L.append(I(f"buffer_load_dwordx4 {rng('a', dst+4*j, 4)}, v{vOst}, s[{sQ}:{sQ+3}], s{sT2} offen offset:{64*j}", after=a, **kw))
                L[-1].lat = 1
            return
        L.append(I(f"s_add_u32 m0, s{sQw}, {grp*4096}", after=a, **kw))
        for j in range(4):
            L.append(I(f"buffer_load_dwordx4 v{voffK}, s[{sQ}:{sQ+3}], s{sT2} offen offset:{1024*j} lds", tag=('Q', grp), after=a, **kw))
    gid = [0]
    def read_k(L, tile, kb, after=()):
        gid[0] += 1
        for s in range(4):
            L.append(I(f"ds_read_b128 {rng('a', FR[4*kb+s], 4)}, v{vKrd} offset:{KB0 + slot_of('K', tile)*KS + kb*4*KP + 64*s}",
                       after=list(after), grp=gid[0], glue=(s > 0)))
    def read_v(L, tile, e, after=()):
        gid[0] += 1
        for o in range(2):
            for u in range(2):
                L.append(I(f"ds_read_b64_tr_b16 {rng('a', FR[2*e+o] + 2*u, 2)}, v{vVrd[e]} offset:{slot_of('V', tile)*VS + u*4*VP + 8*o}",
                           after=list(after), grp=gid[0], glue=(o + u > 0)))
    def read_q(L, qb, direct=False):
        gid[0] += 1
        if qb >= NQL:
            if not direct:
                for r in range(16): L.append(I(f"v_accvgpr_mov_b32 a{Q[qb]+r}, a{QX[qb]+r}"))
            return
        for s in range(4):
            L.append(I(f"ds_read_b128 {rng('a', Q[qb]+4*s, 4)}, v{vQrd} offset:{qb*4096 + 64*s}",
                       grp=gid[0], glue=(s > 0), waits=[('Q', qb)] if s == 0 else None))
    def qk_chain(L, buf, kb, qb):
        d = rng('v', S[buf][qb] + 4 * kb, 4)
        for s in range(4):
            L.append(I(f"{MF} {d}, {rng('a', FR[4*kb+s], 4)}, {rng('a', Q[qb]+4*s, 4)}, {d if s else '0'}"))
    def softmax_quad(L, buf, kb, qb):
        b = S[buf][qb] + 4 * kb; pb = S[buf][qb] + 2 * kb
        for k in range(4): L.append(I(f"v_fma_f32 v{b+k}, v{b+k}, s{sC}, v{NM[qb]}"))
        for k in range(4): L.append(I(f"v_exp_f32 v{b+k}, v{b+k}"))
        L.append(I(f"v_cvt_pk_bf16_f32 v{pb}, v{b}, v{b+1}"))
        L.append(I(f"v_cvt_pk_bf16_f32 v{pb+1}, v{b+2}, v{b+3}"))
    def rowmax(L, buf, qb):
        b = S[buf][qb]; t, u = TM
        L.append(I(f"v_max3_f32 v{t}, v{b}, v{b+1}, v{b+2}"))
        L.append(I(f"v_max_f32 v{t}, v{t}, v{b+3}"))
        L.append(I(f"v_mov_b32 v{u}, v{t}"))
        L.append(I(f"v_permlane32_swap_b32 v{t}, v{u}"))
        L.append(I(f"v_max_f32 v{t}, v{t}, v{u}"))
        L.append(I(f"v_mov_b32 v{u}, v{t}"))
        L.append(I(f"v_permlane16_swap_b32 v{t}, v{u}"))
        L.append(I(f"v_max_f32 v{t}, v{t}, v{u}"))
        L.append(I(f"v_mul_f32 v{NM[qb]}, -v{t}, s{sC}"))
    def msum(L, buf, first):
        for qb in range(NQ):
            d = rng('a', LS[qb], 4)
            L.append(I(f"{MF} {d}, {rng('a', ONES, 4)}, {rng('v', S[buf][qb], 4)}, {'0' if first else d}"))
    def pv_db(L, buf, db, first):
        for qb in range(NQ):
            d = rng(O[qb][0], O[qb][1] + 4 * db, 4)
            L.append(I(f"{MF} {d}, {rng('a', FR[db], 4)}, {rng('v', S[buf][qb], 4)}, {'0' if first else d}"))
    tpi = [0]
    def epi_l(L, sbit_update=True):
        pass
    def epi_unit(L, qb, e, sbase):
        f, b = O[qb]; tp = TP[tpi[0] % 2]; tpi[0] += 1
        ri = RINV[qb % 2]
        for o in range(2):
            base = b + 4 * (2 * e + o)
            if f == 'v':
                for r in range(4): L.append(I(f"v_mul_f32 v{base+r}, v{base+r}, v{ri}"))
                src = base
            else:
                for r in range(4): L.append(I(f"v_accvgpr_read_b32 v{TA+r}, a{base+r}"))
                for r in range(4): L.append(I(f"v_mul_f32 v{TA+r}, v{TA+r}, v{ri}"))
                src = TA
            L.append(I(f"v_cvt_pk_bf16_f32 v{tp+2*o}, v{src}, v{src+1}"))
            L.append(I(f"v_cvt_pk_bf16_f32 v{tp+2*o+1}, v{src+2}, v{src+3}"))
        L.append(I(f"s_add_u32 s{sOp}, s{sbase}, {qb*4096}"))
        L.append(I(f"buffer_store_dwordx4 {rng('v', tp, 4)}, v{vOst}, s[{sO}:{sO+3}], s{sOp} offen offset:{64*e}", tag=('O',)))
    def epi_rinv(L, qb, check):
        ri = RINV[qb % 2]
        L.append(I(f"v_accvgpr_read_b32 v{ri}, a{LS[qb]}"))
        if check:
            L.append(I(f"v_cmp_nge_f32 vcc, s{sThr}, v{ri}"))
            L.append(I(f"s_cmp_lg_u64 vcc, 0"))
            L.append(I(f"s_cselect_b32 s{sOp}, s{sBit}, 0"))
            L.append(I(f"s_or_b32 s{sFlag}, s{sFlag}, s{sOp}"))
        L.append(I(f"v_rcp_f32 v{ri}, v{ri}"))
    def epilogue(L, es, sbase, check):
        for qb in range(NQ):
            epi_rinv(L, qb, check)
            for e in es: epi_unit(L, qb, e, sbase)

    dma_kv(pro, 'K', 0, False)
    for g in range(NQ): dma_q(pro, g, sOc, direct=True)
    dma_kv(pro, 'K', 1, False); dma_kv(pro, 'V', 0, False); dma_kv(pro, 'K', 2, False); dma_kv(pro, 'V', 1, False); dma_kv(pro, 'K', 3, False); dma_kv(pro, 'V', 2, False)
    P("s_barrier", waits=[('K', 0), ('K', 1)])
    p2 = []
    read_k(p2, 0, 0); read_k(p2, 0, 1)
    for qb in range(NQ): read_q(p2, qb, direct=True)
    for kb in range(2):
        for qb in range(NQ):
            qk_chain(p2, 0, kb, qb)
            if kb == 0: rowmax(p2, 0, qb)
            softmax_quad(p2, 0, kb, qb)
    read_k(p2, 1, 0)
    pro += schedule(p2, lat_lds=cfg.lat_lds)
    segs['pro'] = pro

    def iteration(i, variant=''):
        L = []
        nt = (i + 1) % 16; nb = (i + 1) % 2; cb = i % 2
        last = (variant == 'L')
        n = 0; bar = None
        if not last:
            read_k(L, nt, 1)
        def after_bar():
            if not last:
                t = i + 4; dma_kv(L, 'K', t % 16, t >= 16, after=[bar])
                t = i + 3; dma_kv(L, 'V', t % 16, t >= 16, after=[bar])
            if 1 <= i <= 6:
                dma_q(L, i - 1, sQn, after=[bar])
        if last:
            bar = I("s_barrier", pin=True, waits=[('V', i)]); L.append(bar)
            for e in range(2): read_v(L, i, e, after=[bar])
        else:
            for kb in range(2):
                for qb in range(NQ):
                    qk_chain(L, nb, kb, qb); n += 4
                    if i == 15 and kb == 0: rowmax(L, nb, qb)
                    softmax_quad(L, nb, kb, qb)
                    if i == 14 and kb == 1: read_q(L, qb)
                    if n == cfg.bar_pos:
                        bar = I("s_barrier", pin=True, waits=[('V', i), ('K', (i + 2) % 16)]); L.append(bar)
                        after_bar()
                if kb == 0:
                    for e in range(2): read_v(L, i, e, after=[bar])
        if i == 0 and variant != 'F':
            epilogue(L, range(cfg.epi_e15, 4), sOb, False)
        for e in range(2, 4): read_v(L, i, e, after=[bar])
        msum(L, cb, i == 0)
        for db in range(8):
            pv_db(L, cb, db, i == 0)
            if db == 3 and not last: read_k(L, (i + 2) % 16, 0, after=[bar])
        if i == 15:
            epilogue(L, range(0, 4 if last else cfg.epi_e15), sOc, True)
        return schedule(L, lat_lds=cfg.lat_lds, rate_scale=cfg.rate_scale)

    segs['it0F'] = iteration(0, 'F') + [I("s_branch L_it1")]
    for i in range(16):
        segs[f'it{i}'] = iteration(i)
    segs['it14'] += [I(f"s_cmp_eq_u32 s{sBlk}, 3"), I("s_cbranch_scc1 L_it15L")]
    adv = [f"s_mov_b32 s{sOb}, s{sOc}", f"s_mov_b32 s{sOc}, s{sQn}", f"s_mov_b32 s{sKVc}, s{sKVn}",
           f"s_add_u32 s{sBlk}, s{sBlk}, 1", f"s_lshl_b32 s{sBit}, s{sBit}, 1",
           f"s_add_u32 s{sKVn}, s{sKVn}, {16 << 17}", f"s_add_u32 s{sQn}, s{sQn}, {16*768*256}",
           f"s_cmp_eq_u32 s{sBlk}, 3",
           f"s_cselect_b32 s{sKVn}, 0x20000000, s{sKVn}", f"s_cselect_b32 s{sQn}, 0x20000000, s{sQn}",
           "s_branch L_it0"]
    segs['it15'] += [I(t) for t in adv]
    segs['it15L'] = iteration(15, 'L')

    path = ['pro', 'it0F'] + [f'it{i}' for i in range(1, 16)] + [f'it{i}' for i in range(16)] + \
           [f'it{i}' for i in range(15)] + ['it15L']
    st = WaitState(); reqs = {}
    for name in path:
        r = compute_waits(segs[name], st)
        reqs[name] = merge_req(reqs.get(name, {}), r)
    for name in reqs: segs[name] = insert_waits(segs[name], reqs[name])
    nn = 0
    for rep in range(2):
        for a, b in zip([None] + path[:-1], path):
            segs[b], k = fix_hazards(segs[b], history=segs[a][-30:] if a else ()); nn += k
    full = sum((segs[n] for n in path), [])
    bad = check_waits(full, WaitState()); assert not bad, bad[:5]
    bad = check_hazards(full); assert not bad, bad[:5]
    cnt = defaultdict(int)
    for i in range(16):
        for c in segs[f'it{i}']: cnt[c.kind] += 1
    print("per-block counts", dict(cnt), "nops inserted", nn, file=sys.stderr)

    out = [HEADER]
    T = lambda seg: [c.text for c in segs[seg]]
    out += T('pro') + T('it0F')
    out += [".p2align 6", "L_it0:"] + T('it0') + ["L_it1:"]
    for i in range(1, 16): out += [f"; ---- iteration {i}"] + T(f'it{i}')
    out += ["L_it15L:"] + T('it15L')
    fin = ["s_waitcnt vmcnt(0) lgkmcnt(0)"]
    if cfg.stamps:
        fin += ["s_memtime s[68:69]", "s_memrealtime s[70:71]", "s_waitcnt lgkmcnt(0)",
                "s_mov_b32 s72, s60", "s_mov_b32 s73, s61", "s_mov_b32 s74, 0x1000000", "s_mov_b32 s75, 0x20000",
                "s_sub_u32 s68, s68, s64", "s_sub_u32 s70, s70, s66",
                "v_lshrrev_b32 v32, 6, v0", "v_lshlrev_b32 v32, 4, v32", "s_lshl_b32 s3, s2, 8", "v_add_u32 v32, s3, v32",
                "v_mov_b32 v36, s68", "v_mov_b32 v37, s70", "v_mov_b32 v38, s66", f"v_mov_b32 v39, s{sFlag}",
                "v_and_b32 v33, 63, v0", "v_cmp_eq_u32 vcc, 0, v33", "s_and_saveexec_b64 s[76:77], vcc",
                "buffer_store_dwordx4 v[36:39], v32, s[72:75], 0 offen", "s_mov_b64 exec, s[76:77]", "s_waitcnt vmcnt(0)"]
    out += fin
    out += ["L_end:", "s_endpgm", KD]
    return "\n".join(out) + "\n"

if __name__ == "__main__":
    cfg = Cfg()
    for a in sys.argv[2:]:
        k, v = a.split('='); setattr(cfg, k, eval(v))
    print(build(cfg), file=open(sys.argv[1], 'w'), end='')
```

```python
import re
from collections import defaultdict

REG_RE = re.compile(r'\b([vas])\[(\d+):(\d+)\]|\b([vas])(\d+)\b|\b(vcc|m0|exec|scc)\b')
TRANS = ('v_exp_f32', 'v_rcp_f32', 'v_log_f32', 'v_rsq_f32', 'v_sqrt_f32')

def regs_of(tok):
    out = []
    for m in REG_RE.finditer(tok):
        if m.group(1):
            out += [f"{m.group(1)}{i}" for i in range(int(m.group(2)), int(m.group(3)) + 1)]
        elif m.group(4):
            out.append(f"{m.group(4)}{m.group(5)}")
        else:
            out.append(m.group(6))
    return out

def split_ops(s):
    ops, depth, cur = [], 0, ''
    for ch in s:
        if ch == '[': depth += 1
        if ch == ']': depth -= 1
        if ch == ',' and depth == 0:
            ops.append(cur.strip()); cur = ''
        else:
            cur += ch
    if cur.strip(): ops.append(cur.strip())
    return ops

class I:
    __slots__ = ('text', 'mn', 'kind', 'rd', 'wr', 'cost', 'tag', 'waits', 'passes', 'srcc', 'ab',
                 'after', 'idx', 'pin', 'prio', 'preds', 'succs', 'asap', 'alap', 'gap', 'note', 'lat', 'mingap', 'maxgap', 'grp', 'glue')
    def __init__(self, text, tag=None, waits=None, after=(), pin=False, cost=None, note=None, mingap=None, maxgap=None, grp=None, glue=False):
        self.text = text
        self.tag = tag
        self.waits = waits
        self.after = list(after)
        self.pin = pin
        self.note = note
        self.mingap = mingap
        self.maxgap = maxgap
        self.grp = grp
        self.glue = glue
        self.lat = None
        parts = text.split(None, 1)
        mn = parts[0]
        self.mn = mn
        ops = split_ops(parts[1]) if len(parts) > 1 else []
        rd, wr = [], []
        self.passes = 0; self.srcc = []; self.ab = []
        if mn.endswith(':'):
            self.kind = 'label'
        elif mn.startswith('v_mfma'):
            self.kind = 'mfma'
            self.passes = 4 if '16x16x32' in mn else 8
            wr = regs_of(ops[0]); self.ab = regs_of(ops[1]) + regs_of(ops[2]); self.srcc = regs_of(ops[3])
            rd = self.ab + self.srcc
        elif mn.startswith('v_cmp'):
            self.kind = 'valu'
            wr = regs_of(ops[0]); rd = sum((regs_of(o) for o in ops[1:]), [])
        elif mn.startswith('v_permlane') and 'swap' in mn:
            self.kind = 'valu'
            wr = regs_of(ops[0]) + regs_of(ops[1]); rd = list(wr)
        elif mn.startswith('v_'):
            self.kind = 'trans' if mn.replace('_e32', '').replace('_e64', '') in TRANS else 'valu'
            wr = regs_of(ops[0]); rd = sum((regs_of(o) for o in ops[1:]), [])
            if mn.startswith(('v_fmac', 'v_dot2c')): rd += wr
            if mn.startswith(('v_add_co', 'v_sub_co', 'v_addc_co')):
                wr += regs_of(ops[1]); rd = sum((regs_of(o) for o in ops[2:]), [])
        elif mn.startswith('ds_read'):
            self.kind = 'ldsr'
            wr = regs_of(ops[0]); rd = regs_of(ops[1])
        elif mn.startswith('ds_write'):
            self.kind = 'ldsw'
            rd = sum((regs_of(o) for o in ops), [])
        elif mn.startswith(('buffer_load', 'global_load')):
            if re.search(r'\blds\b', text) or 'load_lds' in mn:
                self.kind = 'dma'
                rd = sum((regs_of(o) for o in ops), []) + ['m0']
            else:
                self.kind = 'vload'
                wr = regs_of(ops[0]); rd = sum((regs_of(o) for o in ops[1:]), [])
        elif mn.startswith(('buffer_store', 'global_store')):
            self.kind = 'vstore'
            rd = sum((regs_of(o) for o in ops), [])
        elif mn == 's_waitcnt':
            self.kind = 'wait'
        elif mn == 's_barrier':
            self.kind = 'barrier'
        elif mn == 's_nop':
            self.kind = 'nop'
        elif mn.startswith(('s_cbranch', 's_branch', 's_endpgm')):
            self.kind = 'branch'
            if 'scc' in mn: rd = ['scc']
            if 'vcc' in mn: rd = ['vcc']
        elif mn.startswith(('s_load', 's_memtime', 's_memrealtime')):
            self.kind = 'smem'
            wr = regs_of(ops[0]); rd = sum((regs_of(o) for o in ops[1:]), [])
        elif mn.startswith('s_cmp'):
            self.kind = 'salu'
            wr = ['scc']; rd = sum((regs_of(o) for o in ops), [])
        elif mn.startswith('s_setprio'):
            self.kind = 'salu'
        elif mn.startswith('s_'):
            self.kind = 'salu'
            wr = regs_of(ops[0]); rd = sum((regs_of(o) for o in ops[1:]), [])
            if mn.startswith(('s_add', 's_sub', 's_and', 's_or', 's_xor', 's_lshl', 's_lshr', 's_andn2', 's_min', 's_max', 's_bfe', 's_not')):
                wr.append('scc')
            if mn.startswith(('s_cselect', 's_addc', 's_subb')): rd.append('scc')
            if 'saveexec' in mn: wr.append('exec'); rd.append('exec')
            if mn.startswith(('s_addk', 's_mulk')): rd += regs_of(ops[0])
        else:
            raise ValueError("unknown instruction " + text)
        self.rd = rd; self.wr = wr
        if cost is None:
            cost = {'mfma': 8, 'trans': 8, 'valu': 4, 'ldsr': 12, 'ldsw': 8, 'dma': 12, 'vload': 8, 'vstore': 12,
                    'salu': 4, 'smem': 4, 'wait': 4, 'barrier': 4, 'nop': 4, 'branch': 4, 'label': 0}[self.kind]
        self.cost = cost
    def __repr__(self): return self.text

def is_valu(i): return i.kind in ('valu', 'trans')

def required_ws(p, c):
    need = 0
    pw = set(p.wr)
    if is_valu(p):
        vw = {r for r in pw if r[0] in 'va' and r not in ('vcc',)}
        sw = {r for r in pw if r[0] == 's' or r == 'vcc'}
        if c.kind == 'mfma' and vw & set(c.rd): need = max(need, 2)
        if c.mn.startswith('v_permlane') and vw & set(c.rd): need = max(need, 2)
        if c.mn.startswith(('v_readlane', 'v_readfirstlane')) and vw & set(c.rd): need = max(need, 1)
        if 'dpp' in c.text or 'row_' in c.text or 'quad_perm' in c.text:
            if vw & set(c.rd): need = max(need, 2)
        if p.kind == 'trans' and is_valu(c) and c.kind != 'trans' and vw & set(c.rd): need = max(need, 1)
        if ('sdwa' in p.text and 'dst_sel:DWORD' not in p.text) and is_valu(c) and vw & (set(c.rd) | set(c.wr)): need = max(need, 1)
        if sw:
            if is_valu(c) and sw & set(c.rd): need = max(need, 2)
            if c.kind in ('dma', 'vload', 'vstore') and sw & set(c.rd): need = max(need, 5)
            if c.kind == 'mfma' and sw & set(c.rd): need = max(need, 2)
        if 'exec' in pw and (c.kind == 'mfma'): need = max(need, 4)
    if p.kind == 'mfma':
        n = p.passes
        far = {4: 8, 8: 12}[n]
        if c.kind == 'mfma':
            if pw & set(c.ab): need = max(need, far)
            if pw & set(c.srcc):
                if list(p.wr) == list(c.srcc) and p.passes == c.passes: pass
                else: need = max(need, {4: 6, 8: 10}[n])
            elif pw & set(c.wr):
                need = max(need, {4: 6, 8: 10}[n])
        elif is_valu(c):
            if pw & (set(c.rd) | set(c.wr)): need = max(need, far)
            if set(p.srcc) & set(c.wr): need = max(need, {4: 3, 8: 7}[n])
        elif c.kind in ('ldsr', 'ldsw', 'dma', 'vload', 'vstore'):
            if pw & (set(c.rd) | set(c.wr)): need = max(need, far)
    if p.kind == 'salu' and 'm0' in pw and c.kind == 'dma': need = max(need, 1)
    if p.kind == 'vstore' and ('x4' in p.mn or 'x3' in p.mn):
        data = set(regs_of(split_ops(p.text.split(None, 1)[1])[0]))
        if data & set(c.wr): need = max(need, 2 if is_valu(c) else 1)
    return need

def ws_of(i):
    if i.kind == 'label': return 0
    if i.kind == 'nop': return int(i.text.split()[1]) + 1
    return 1

def fix_hazards(seq, history=()):
    out = list(history)
    nh = len(out)
    nins = 0
    for c in seq:
        if c.kind in ('label', 'nop', 'wait'):
            out.append(c); continue
        dist = 0; pad = 0
        for p in reversed(out[-40:]):
            if dist >= 20: break
            need = required_ws(p, c)
            if need > dist: pad = max(pad, need - dist)
            dist += ws_of(p)
        while pad > 0:
            k = min(pad, 16)
            out.append(I(f"s_nop {k-1}")); pad -= k; nins += 1
        out.append(c)
    return out[nh:], nins

def check_hazards(seq):
    bad = []
    for n, c in enumerate(seq):
        if c.kind in ('label', 'nop', 'wait'): continue
        dist = 0
        for p in reversed(seq[max(0, n-40):n]):
            if dist >= 20: break
            need = required_ws(p, c)
            if need > dist: bad.append((p.text, c.text, need, dist))
            dist += ws_of(p)
    return bad

class WaitState:
    def __init__(self):
        self.lds = []
        self.vm = []
    def copy(self):
        w = WaitState(); w.lds = list(self.lds); w.vm = list(self.vm); return w

def needed_waits(c, st):
    lg = None; vm = None
    touched = set(c.rd) | set(c.wr)
    for k, op in enumerate(st.lds):
        if op.kind == 'ldsr' and set(op.wr) & touched:
            k2 = k
            if op.grp is not None:
                for j in range(k, len(st.lds)):
                    if st.lds[j].grp == op.grp: k2 = j
            n = len(st.lds) - 1 - k2
            lg = n if lg is None else min(lg, n)
        if op.kind == 'smem' and set(op.wr) & touched:
            lg = 0
    for k, op in enumerate(st.vm):
        hit = False
        if op.kind == 'vload' and set(op.wr) & touched: hit = True
        if c.waits and op.tag is not None and op.tag in c.waits: hit = True
        if hit:
            n = len(st.vm) - 1 - k
            vm = n if vm is None else min(vm, n)
    if c.waits and 'LDSALL' in c.waits and st.lds: lg = 0
    if lg is not None and any(o.kind == 'smem' for o in st.lds): lg = 0
    return lg, vm

def apply_wait(st, lg, vm):
    if lg is not None:
        st.lds = st.lds[len(st.lds) - lg:] if lg > 0 else []
    if vm is not None:
        st.vm = st.vm[len(st.vm) - vm:] if vm > 0 else []

WAIT_RE_L = re.compile(r'lgkmcnt\((\d+)\)'); WAIT_RE_V = re.compile(r'vmcnt\((\d+)\)')
def step_state(st, c):
    if c.kind == 'wait':
        ml = WAIT_RE_L.search(c.text); mv = WAIT_RE_V.search(c.text)
        lg = int(ml.group(1)) if ml else None; vm = int(mv.group(1)) if mv else None
        if lg is not None and lg >= len(st.lds): lg = None
        if vm is not None and vm >= len(st.vm): vm = None
        apply_wait(st, lg, vm)
    elif c.kind in ('ldsr', 'ldsw', 'smem'):
        st.lds.append(c)
    elif c.kind in ('dma', 'vload', 'vstore'):
        st.vm.append(c)

def compute_waits(seq, st):
    req = {}
    for n, c in enumerate(seq):
        if c.kind not in ('wait', 'label', 'nop'):
            lg, vm = needed_waits(c, st)
            if lg is not None or vm is not None:
                if lg is not None: lg = min(lg, 15)
                if vm is not None: vm = min(vm, 63)
                req[n] = (lg, vm)
                apply_wait(st, lg, vm)
        step_state(st, c)
    return req

def merge_req(a, b):
    out = dict(a)
    for k, (lg, vm) in b.items():
        if k in out:
            l0, v0 = out[k]
            lg = l0 if lg is None else (lg if l0 is None else min(lg, l0))
            vm = v0 if vm is None else (vm if v0 is None else min(vm, v0))
        out[k] = (lg, vm)
    return out

def insert_waits(seq, req):
    out = []
    for n, c in enumerate(seq):
        if n in req:
            lg, vm = req[n]
            t = 's_waitcnt'
            if vm is not None: t += f" vmcnt({vm})"
            if lg is not None: t += f" lgkmcnt({lg})"
            out.append(I(t))
        out.append(c)
    return out

def check_waits(seq, st):
    bad = []
    for n, c in enumerate(seq):
        if c.kind not in ('wait', 'label', 'nop'):
            lg, vm = needed_waits(c, st)
            if lg is not None or vm is not None: bad.append((n, c.text, lg, vm))
            apply_wait(st, lg, vm)
        step_state(st, c)
    return bad

class Unit:
    def __init__(self, members):
        self.members = members
        f = members[0]
        self.kind = f.kind if all(m.kind == f.kind for m in members) else members[-1].kind
        self.mn = members[-1].mn; self.text = " ; ".join(m.text for m in members)
        self.rd = sum((m.rd for m in members), []); self.wr = sum((m.wr for m in members), [])
        self.after = sum((m.after for m in members), []); self.pin = False
        self.srcc = []; self.ab = []; self.passes = 0; self.lat = f.lat
        self.mingap = f.mingap; self.maxgap = f.maxgap
        if all(m.kind == 'ldsr' for m in members): self.cost = 12 + 4 * (len(members) - 1)
        else: self.cost = sum(m.cost for m in members)
def make_units(prog):
    out = []; umap = {}
    for i in prog:
        if i.glue and out:
            prev = out[-1]
            mem = (prev.members if isinstance(prev, Unit) else [prev]) + [i]
            out[-1] = Unit(mem)
        else:
            out.append(i)
    for u in out:
        if isinstance(u, Unit):
            for m in u.members: umap[id(m)] = u
    for u in out:
        u.after = [umap.get(id(p), p) for p in u.after]
    return out

def schedule(prog, lat_lds=7, lat_mfma_valu=None, rate_scale=1.0, verbose=False, min_rate=None):
    prog = make_units(prog)
    for n, i in enumerate(prog):
        i.idx = n; i.preds = []; i.succs = []
    lastw = {}; readers = defaultdict(list)
    def edge(p, c, lat):
        if p is c: return
        c.preds.append((p, lat)); p.succs.append((c, lat))
    bb = [i for i in prog if i.kind == 'mfma' or i.pin]
    for g, i in enumerate(bb): i.gap = g
    isbb = lambda i: i.kind == 'mfma' or i.pin
    def lat_of(p, c, typ):
        if typ == 'raw':
            if p.kind == 'mfma':
                if c.kind == 'mfma' and list(p.wr) == list(c.srcc) and not (set(p.wr) & set(c.ab)): return 0
                return lat_mfma_valu if lat_mfma_valu is not None else (5 if p.passes == 4 else 4)
            if p.kind == 'ldsr': return lat_lds if True else 0
            if p.kind == 'vload': return p.lat if getattr(p, 'lat', None) else 60
            if is_valu(p) and c.kind == 'mfma': return 1
            return 0
        if typ == 'waw':
            if p.kind == 'mfma' and c.kind != 'mfma': return 5 if p.passes == 4 else 4
            return 0
        if typ == 'war':
            if p.kind == 'mfma' and is_valu(c) and set(p.srcc) & set(c.wr): return 2
            return 0
    lastlds = None; lastvm = None
    for i in prog:
        for r in i.rd:
            if r in lastw: edge(lastw[r], i, lat_of(lastw[r], i, 'raw'))
        for r in i.wr:
            if r in lastw: edge(lastw[r], i, lat_of(lastw[r], i, 'waw'))
            for q in readers[r]: edge(q, i, lat_of(q, i, 'war'))
        for p in i.after: edge(p, i, 0)
        for r in i.rd: readers[r].append(i)
        for r in i.wr:
            lastw[r] = i; readers[r] = []
    nb = len(bb)
    for i in prog:
        if isbb(i): i.asap = i.gap; continue
        a = -1
        for p, lat in i.preds:
            a = max(a, (p.gap if isbb(p) else p.asap) + lat)
        if i.mingap is not None: a = max(a, i.mingap)
        i.asap = min(a, nb - 1)
    for i in reversed(prog):
        if isbb(i): i.alap = i.gap; continue
        a = nb - 1
        for s, lat in i.succs:
            if isbb(s): a = min(a, s.gap - 1 - max(lat - 1, 0) if lat > 0 else s.gap - 1)
            else: a = min(a, s.alap - lat)
        if i.maxgap is not None: a = min(a, i.maxgap)
        i.alap = max(a, i.asap)
    fillers = [i for i in prog if not isbb(i)]
    total = sum(i.cost for i in fillers)
    rate = total / max(nb, 1) * rate_scale
    if min_rate is not None: rate = max(rate, min_rate)
    placed = set(); out = []
    import heapq
    npred = {id(i): sum(1 for p, _ in i.preds if not isbb(p)) for i in fillers}
    readyat = {id(i): max([-1] + [p.gap + lat for p, lat in i.preds if isbb(p)] + ([i.mingap] if i.mingap is not None else [])) for i in fillers}
    avail = [i for i in fillers if npred[id(i)] == 0]
    remaining = float(total)
    floor = 8.0 if any(b.kind == 'mfma' and b.passes == 4 for b in bb) else 24.0
    for g in range(-1, nb):
        if g >= 0:
            out.append(bb[g])
        gaps_left = nb - max(g, 0)
        target = max(floor, remaining / gaps_left * rate_scale) if g >= 0 else 0
        if g >= 0 and bb[g].kind != 'mfma': target = 0
        used = 0.0
        while True:
            cand = [i for i in avail if readyat[id(i)] <= g or i.alap <= g]
            if not cand: break
            cand.sort(key=lambda i: (i.alap, i.idx))
            i = cand[0]
            forced = i.alap <= g or g == nb - 1
            if not forced:
                room = target - used
                if room < 2: break
                if i.cost > room + 2 and used > 0:
                    alt = [j for j in cand[1:12] if j.cost <= room + 2]
                    if not alt: break
                    i = alt[0]
            avail.remove(i); out.append(i); i.gap = g; used += i.cost; remaining -= i.cost
            for s, lat in i.succs:
                if not isbb(s):
                    npred[id(s)] -= 1
                    readyat[id(s)] = max(readyat[id(s)], g + lat)
                    if npred[id(s)] == 0: avail.append(s)
    assert len(out) == len(prog), (len(out), len(prog))
    pos = {id(i): n for n, i in enumerate(out)}
    for i in prog:
        for p, _ in i.preds:
            assert pos[id(p)] < pos[id(i)], ("dep violated", p.text, i.text)
    flat = []
    for i in out:
        flat += i.members if isinstance(i, Unit) else [i]
    return flat
```

```python
import sys, struct
from fw import *

HEADER = """; Kernarg layout for this problem (48 bytes, ptrs only, base s[0:1]):
; @launch grid=(256,1,1) block=(256,1,1) lds=163840
.amdgcn_target "amdgcn-amd-amdhsa--gfx950"
.text
.globl standalone__mha_softmax__near_ridge_kernel
.p2align 8
.type standalone__mha_softmax__near_ridge_kernel,@function
standalone__mha_softmax__near_ridge_kernel:"""

KD = """.section .rodata,"a"
.p2align 6
.amdhsa_kernel standalone__mha_softmax__near_ridge_kernel
  .amdhsa_next_free_vgpr 512
  .amdhsa_next_free_sgpr 102
  .amdhsa_accum_offset 256
  .amdhsa_group_segment_fixed_size 0
  .amdhsa_kernarg_size 48
  .amdhsa_user_sgpr_count 2
  .amdhsa_user_sgpr_kernarg_segment_ptr 1
  .amdhsa_system_sgpr_workgroup_id_x 1
.end_amdhsa_kernel"""

def rng(f, b, n): return f"{f}[{b}:{b+n-1}]"
def f32(x): return "0x%08x" % struct.unpack("<I", struct.pack("<f", x))[0]
MF = "v_mfma_f32_16x16x32_bf16"

class Cfg:
    NQ = 6
    NKS = 4; NVS = 4
    NQL = 5
    KP = 1088; VP = 1032
    bar_pos = 12
    lat_lds = 8
    stamps = False
    thr = 2.0 ** 40
    rate_scale = 1.0
    ndefer = 2
    qdma_it = (3, 5, 7, 9, 11, 12)
    drain_it = (1, 2, 4, 6, 8)
    nt_q = False
    nt_o = False
    nt_kv = False
    epi_e15 = 1

def build(cfg):
    NQ = cfg.NQ; KP = cfg.KP; VP = cfg.VP
    KS = 8 * KP; VS = 8 * VP
    KB0 = 0; VB0 = cfg.NKS * KS; QB0 = VB0 + cfg.NVS * VS
    QB0 = (QB0 + 15) // 16 * 16
    NQL = cfg.NQL
    assert QB0 + 4 * NQL * 4096 <= 163840, QB0
    vKrd, vV0, voffK, voffV, vQrd, vOst = 1, 2, 6, 7, 8, 9
    vVrd = [2, 3, 4, 5]
    RINV = [10, 11]
    TM = [12, 13]
    NM = [14 + q for q in range(NQ)]
    TP = [20, 24]
    TA = 28
    S = [[32 + (b * NQ + q) * 8 for q in range(NQ)] for b in range(2)]
    NOV = 4
    O = [('v', 128 + 32 * q) for q in range(NOV)]
    FR = [4 * i for i in range(8)]
    Q = [32 + 16 * q for q in range(NQ)]
    ONES = 128
    LS = [132 + 4 * q for q in range(NQ)]
    O += [('a', 156 + 32 * q) for q in range(NQ - NOV)]
    QX = {q: 220 + 16 * (q - NQL) for q in range(NQL, NQ)}
    sQ, sK, sV, sO = 12, 16, 20, 24
    sWave = 30; sC = 31; sKVc = 32; sKVn = 33; sQn = 34; sOc = 35; sOp = 36; sKw = 37; sVw = 38; sQw = 39
    sT = 40; sT2 = 41; sBlk = 42; sFlag = 43; sThr = 44; sOb = 45; sOn = 46; sBit = 47
    c_scale = (128 ** -0.5) * 1.4426950408889634

    segs = {}
    NTKV = ' nt' if cfg.nt_kv else ''
    pro = []
    P = lambda t, **k: (pro.append(I(t, **k)), pro[-1])[1]
    P("s_cmp_ge_u32 s2, 256"); P("s_cbranch_scc1 L_end")
    P("s_load_dwordx4 s[4:7], s[0:1], 0"); P("s_load_dwordx4 s[8:11], s[0:1], 16")
    if cfg.stamps:
        P("s_load_dwordx2 s[60:61], s[0:1], 40"); P("s_memtime s[64:65]"); P("s_memrealtime s[66:67]")
    P("v_and_b32 v32, 63, v0")
    P("v_lshrrev_b32 v33, 6, v0")
    P("v_lshrrev_b32 v34, 4, v32")
    P("v_readfirstlane_b32 s30, v33")
    P("v_and_b32 v35, 15, v32")
    P("v_xor_b32 v36, v35, v34"); P("v_lshlrev_b32 v36, 4, v36"); P(f"v_lshl_add_u32 v{voffK}, v34, 8, v36")
    P("v_lshlrev_b32 v36, 2, v34"); P("v_xor_b32 v36, v35, v36"); P("v_lshlrev_b32 v36, 4, v36"); P(f"v_lshl_add_u32 v{voffV}, v34, 8, v36")
    P("v_lshrrev_b32 v36, 2, v35")
    P("v_and_b32 v37, 3, v35")
    P("v_xor_b32 v38, v37, v34"); P("v_lshlrev_b32 v38, 4, v38"); P("v_lshl_add_u32 v38, v37, 8, v38")
    P(f"v_mul_u32_u24 v39, {KP}, v36"); P(f"v_add_u32 v{vKrd}, v39, v38")
    P("v_lshl_add_u32 v38, v36, 10, v38")
    P(f"v_mul_u32_u24 v39, {NQL*4096}, v33"); P("v_add_u32 v38, v38, v39"); P(f"v_add_u32 v{vQrd}, {QB0}, v38")
    P(f"v_mul_u32_u24 v38, {VP}, v34"); P("v_lshl_add_u32 v38, v36, 8, v38"); P("v_lshl_add_u32 v38, v37, 4, v38")
    P(f"v_add_u32 v38, {VB0}, v38")
    for e in range(4):
        P(f"v_xor_b32 v39, {e}, v36"); P(f"v_lshl_add_u32 v{vVrd[e]}, v39, 6, v38")
    P("v_lshlrev_b32 v38, 4, v34"); P(f"v_lshl_add_u32 v{vOst}, v35, 8, v38")
    P(f"v_mul_u32_u24 v39, {NQL*4096}, v33"); P("v_lshl_add_u32 v39, v32, 4, v39"); P(f"v_add_u32 v0, {QB0}, v39")
    P("v_mov_b32 v38, 0x3f803f80")
    for r in range(4): P(f"v_accvgpr_write_b32 a{ONES+r}, v38")
    P("s_waitcnt lgkmcnt(0)")
    for base, src, n in ((sQ, 4, 0x6000000), (sK, 6, 0x4000000), (sV, 8, 0x4000000), (sO, 10, 0x6000000)):
        P(f"s_mov_b32 s{base}, s{src}"); P(f"s_mov_b32 s{base+1}, s{src+1}")
        P(f"s_mov_b32 s{base+2}, {n}"); P(f"s_mov_b32 s{base+3}, 0x20000")
    if cfg.stamps:
        for t in ("s_mov_b32 s72, s60", "s_mov_b32 s73, s61", "s_mov_b32 s74, 0x1000000", "s_mov_b32 s75, 0x20000",
                  "s_lshl_b32 s71, s2, 2", f"s_add_u32 s71, s71, s{sWave}", "s_lshl_b32 s71, s71, 9", "s_add_u32 s71, s71, 0x100000"): P(t)
    P(f"s_mov_b32 s{sC}, {f32(c_scale)}"); P(f"s_mov_b32 s{sThr}, {f32(cfg.thr)}")
    P("s_and_b32 s4, s2, 7"); P("s_lshl_b32 s4, s4, 6"); P("s_lshr_b32 s5, s2, 4"); P("s_add_u32 s4, s4, s5")
    P("s_bfe_u32 s5, s2, 0x10003")
    P(f"s_lshl_b32 s6, s{sWave}, 11")
    P(f"s_lshl_b32 s{sKVc}, s4, 17"); P(f"s_add_u32 s{sKVc}, s{sKVc}, s6")
    P(f"s_add_u32 s{sKVn}, s{sKVc}, {16 << 17}")
    P("s_mul_i32 s6, s4, 768"); P("s_mul_i32 s7, s5, 384"); P("s_add_u32 s6, s6, s7")
    P(f"s_mul_i32 s7, s{sWave}, 96"); P("s_add_u32 s6, s6, s7"); P(f"s_lshl_b32 s{sOc}, s6, 8")
    P(f"s_mov_b32 s{sOb}, 0x20000000")
    P(f"s_add_u32 s{sQn}, s{sOc}, {16*768*256}")
    P(f"s_mul_i32 s{sKw}, s{sWave}, {2*KP}")
    P(f"s_mul_i32 s{sVw}, s{sWave}, {2*VP}"); P(f"s_add_u32 s{sVw}, s{sVw}, {VB0}")
    P(f"s_mul_i32 s{sQw}, s{sWave}, {NQL*4096}"); P(f"s_add_u32 s{sQw}, s{sQw}, {QB0}")
    P(f"s_mov_b32 s{sBlk}, 0"); P(f"s_mov_b32 s{sFlag}, 0"); P(f"s_mov_b32 s{sBit}, 1")

    def dma_kv(L, which, tile, nxt, after=(), mg=None):
        srd, sw, voff, base, SZ, PIT, NS = ((sK, sKw, voffK, KB0, KS, KP, cfg.NKS) if which == 'K'
                                            else (sV, sVw, voffV, 0, VS, VP, cfg.NVS))
        gt = tile + (16 if nxt else 0)
        slot = slot_of(which, tile, nxt)
        tag = (which, tile)
        a = list(after)
        L.append(I(f"s_add_u32 s{sT}, s{sKVn if nxt else sKVc}, {tile*8192}", after=a))
        L.append(I(f"s_add_u32 m0, s{sw}, {base + slot*SZ}", after=a))
        L.append(I(f"buffer_load_dwordx4 v{voff}, s[{srd}:{srd+3}], s{sT} offen{NTKV} lds", tag=tag, after=a, maxgap=mg))
        L.append(I(f"s_add_u32 m0, s{sw}, {base + slot*SZ + PIT - 1024}", after=a))
        L.append(I(f"buffer_load_dwordx4 v{voff}, s[{srd}:{srd+3}], s{sT} offen offset:1024{NTKV} lds", tag=tag, after=a, maxgap=mg + 2 if mg else None))
    def slot_of(which, tile, nxt=False):
        return tile % (cfg.NKS if which == 'K' else cfg.NVS)
    def dma_q(L, grp, sbase, after=(), direct=False, **kw):
        a = list(after)
        L.append(I(f"s_add_u32 s{sT2}, s{sbase}, {grp*4096}", after=a, **kw))
        if grp >= NQL:
            dst = Q[grp] if direct else QX[grp]
            for j in range(4):
                L.append(I(f"buffer_load_dwordx4 {rng('a', dst+4*j, 4)}, v{vOst}, s[{sQ}:{sQ+3}], s{sT2} offen offset:{64*j}{' nt' if cfg.nt_q else ''}", after=a, **kw))
                L[-1].lat = 1
            return
        L.append(I(f"s_add_u32 m0, s{sQw}, {grp*4096}", after=a, **kw))
        for j in range(4):
            L.append(I(f"buffer_load_dwordx4 v{voffK}, s[{sQ}:{sQ+3}], s{sT2} offen offset:{1024*j}{' nt' if cfg.nt_q else ''} lds", tag=('Q', grp), after=a, **kw))
    gid = [0]
    def read_k(L, tile, kb, after=(), maxgap=None):
        gid[0] += 1
        for s in range(4):
            L.append(I(f"ds_read_b128 {rng('a', FR[4*kb+s], 4)}, v{vKrd} offset:{KB0 + slot_of('K', tile)*KS + kb*4*KP + 64*s}",
                       after=list(after), grp=gid[0], glue=(s > 0), maxgap=maxgap))
    def read_v(L, tile, e, after=()):
        gid[0] += 1
        for o in range(2):
            for u in range(2):
                L.append(I(f"ds_read_b64_tr_b16 {rng('a', FR[2*e+o] + 2*u, 2)}, v{vVrd[e]} offset:{slot_of('V', tile)*VS + u*4*VP + 8*o}",
                           after=list(after), grp=gid[0], glue=(o + u > 0)))
    def read_q(L, qb, direct=False, mg=None):
        gid[0] += 1
        if qb >= NQL:
            if not direct:
                for r in range(16): L.append(I(f"v_accvgpr_mov_b32 a{Q[qb]+r}, a{QX[qb]+r}", maxgap=mg))
            return
        for s in range(4):
            L.append(I(f"ds_read_b128 {rng('a', Q[qb]+4*s, 4)}, v{vQrd} offset:{qb*4096 + 64*s}",
                       grp=gid[0], glue=(s > 0), waits=[('Q', qb)] if s == 0 else None, maxgap=mg))
    def qk_chain(L, buf, kb, qb):
        d = rng('v', S[buf][qb] + 4 * kb, 4)
        for s in range(4):
            L.append(I(f"{MF} {d}, {rng('a', FR[4*kb+s], 4)}, {rng('a', Q[qb]+4*s, 4)}, {d if s else '0'}"))
    def softmax_quad(L, buf, kb, qb):
        b = S[buf][qb] + 4 * kb; pb = S[buf][qb] + 2 * kb
        for k in range(4): L.append(I(f"v_fma_f32 v{b+k}, v{b+k}, s{sC}, v{NM[qb]}"))
        for k in range(4): L.append(I(f"v_exp_f32 v{b+k}, v{b+k}"))
        L.append(I(f"v_cvt_pk_bf16_f32 v{pb}, v{b}, v{b+1}"))
        L.append(I(f"v_cvt_pk_bf16_f32 v{pb+1}, v{b+2}, v{b+3}"))
    def rowmax(L, buf, qb):
        b = S[buf][qb]; t, u = TM
        L.append(I(f"v_max3_f32 v{t}, v{b}, v{b+1}, v{b+2}"))
        L.append(I(f"v_max_f32 v{t}, v{t}, v{b+3}"))
        L.append(I(f"v_mov_b32 v{u}, v{t}"))
        L.append(I(f"v_permlane32_swap_b32 v{t}, v{u}"))
        L.append(I(f"v_max_f32 v{t}, v{t}, v{u}"))
        L.append(I(f"v_mov_b32 v{u}, v{t}"))
        L.append(I(f"v_permlane16_swap_b32 v{t}, v{u}"))
        L.append(I(f"v_max_f32 v{t}, v{t}, v{u}"))
        L.append(I(f"v_mul_f32 v{NM[qb]}, -v{t}, s{sC}"))
    def msum(L, buf, first):
        for qb in range(NQ):
            d = rng('a', LS[qb], 4)
            L.append(I(f"{MF} {d}, {rng('a', ONES, 4)}, {rng('v', S[buf][qb], 4)}, {'0' if first else d}"))
    def pv_db(L, buf, db, first):
        for qb in range(NQ):
            d = rng(O[qb][0], O[qb][1] + 4 * db, 4)
            L.append(I(f"{MF} {d}, {rng('a', FR[db], 4)}, {rng('v', S[buf][qb], 4)}, {'0' if first else d}"))
    tpi = [0]
    def epi_l(L, sbit_update=True):
        pass
    def epi_unit(L, qb, e, sbase):
        f, b = O[qb]; tp = TP[tpi[0] % 2]; tpi[0] += 1
        ri = RINV[qb % 2]
        for o in range(2):
            base = b + 4 * (2 * e + o)
            if f == 'v':
                for r in range(4): L.append(I(f"v_mul_f32 v{base+r}, v{base+r}, v{ri}"))
                src = base
            else:
                for r in range(4): L.append(I(f"v_accvgpr_read_b32 v{TA+r}, a{base+r}"))
                for r in range(4): L.append(I(f"v_mul_f32 v{TA+r}, v{TA+r}, v{ri}"))
                src = TA
            L.append(I(f"v_cvt_pk_bf16_f32 v{tp+2*o}, v{src}, v{src+1}"))
            L.append(I(f"v_cvt_pk_bf16_f32 v{tp+2*o+1}, v{src+2}, v{src+3}"))
        if qb < NQL:
            L.append(I(f"ds_write_b128 v{vQrd}, {rng('v', tp, 4)} offset:{qb*4096 + 64*e}"))
            W[qb].append(L[-1])
        else:
            L.append(I(f"s_add_u32 s{sOp}, s{sbase}, {qb*4096}"))
            L.append(I(f"buffer_store_dwordx4 {rng('v', tp, 4)}, v{vOst}, s[{sO}:{sO+3}], s{sOp} offen offset:{64*e}{' nt' if cfg.nt_o else ''}", tag=('O',)))
    W = defaultdict(list)
    DT = [TP[0], TP[1], TA]
    def drain(L, qb, sbase, after=()):
        st = []
        L.append(I(f"s_add_u32 s{sOp}, s{sbase}, {qb*4096}"))
        for j in range(4):
            t = DT[tpi[0] % 3]; tpi[0] += 1
            L.append(I(f"ds_read_b128 {rng('v', t, 4)}, v0 offset:{qb*4096 + 1024*j}", after=list(after)))
            L.append(I(f"buffer_store_dwordx4 {rng('v', t, 4)}, v{voffK}, s[{sO}:{sO+3}], s{sOp} offen offset:{1024*j}{' nt' if cfg.nt_o else ''}", tag=('O',)))
            st.append(L[-1])
        return st
    def epi_rinv(L, qb, check):
        ri = RINV[qb % 2]
        L.append(I(f"v_accvgpr_read_b32 v{ri}, a{LS[qb]}"))
        if check:
            L.append(I(f"v_cmp_nge_f32 vcc, s{sThr}, v{ri}"))
            L.append(I(f"s_cmp_lg_u64 vcc, 0"))
            L.append(I(f"s_cselect_b32 s{sOp}, s{sBit}, 0"))
            L.append(I(f"s_or_b32 s{sFlag}, s{sFlag}, s{sOp}"))
        L.append(I(f"v_rcp_f32 v{ri}, v{ri}"))
    def epilogue(L, es, sbase, check):
        for qb in range(NQ):
            epi_rinv(L, qb, check)
            for e in es: epi_unit(L, qb, e, sbase)

    def pstamp(k):
        if cfg.stamps == 2:
            for t in ("s_memtime s[68:69]", f"s_add_u32 s70, s71, {256 + 4*k}", "s_waitcnt lgkmcnt(0)", "s_sub_u32 s68, s68, s64",
                      f"v_mov_b32 v{TM[0]}, s68", f"buffer_store_dword v{TM[0]}, off, s[72:75], s70"): P(t)
    pstamp(0)
    dma_kv(pro, 'K', 0, False)
    for g in range(NQ): dma_q(pro, g, sOc, direct=True)
    pstamp(1)
    P("s_barrier", waits=[('K', 0)])
    pstamp(2)
    p2 = []
    read_k(p2, 0, 0); read_k(p2, 0, 1)
    late = [('K', 1), ('V', 0), ('K', 2), ('V', 1), ('K', 3), ('V', 2)]
    for kb in range(2):
        for qb in range(NQ):
            if kb == 0: read_q(p2, qb, direct=True)
            qk_chain(p2, 0, kb, qb)
            if kb == 0:
                rowmax(p2, 0, qb)
                w, t = late[qb]; dma_kv(p2, w, t, False, after=[p2[-1]], mg=4 * qb + 6)
            if kb == 0 or qb < NQ - cfg.ndefer: softmax_quad(p2, 0, kb, qb)
    b2 = I("s_barrier", pin=True, waits=[('K', 1)], after=[i for i in p2 if i.tag == ('K', 1)]); p2.append(b2)
    read_k(p2, 1, 0, after=[b2])
    pro += schedule(p2, lat_lds=cfg.lat_lds)
    pstamp(3)
    segs['pro'] = pro

    def iteration(i, variant=''):
        L = []
        nt = (i + 1) % 16; nb = (i + 1) % 2; cb = i % 2
        last = (variant == 'L')
        n = 0; bar = None
        W.clear()
        if not last:
            read_k(L, nt, 1)
        for qb in range(NQ - cfg.ndefer, NQ): softmax_quad(L, cb, 1, qb)
        def after_bar():
            if not last:
                t = i + 4; dma_kv(L, 'K', t % 16, t >= 16, after=[bar], mg=cfg.bar_pos + 3)
                t = i + 3; dma_kv(L, 'V', t % 16, t >= 16, after=[bar], mg=cfg.bar_pos + 7)
            for g in range(NQ):
                if cfg.qdma_it[g] == i: dma_q(L, g, sQn, after=[bar], maxgap=cfg.bar_pos + 30)
            for g in range(NQL):
                if cfg.drain_it[g] == i: drain(L, g, sOb, after=[bar])
        if last:
            bar = I("s_barrier", pin=True, waits=[('V', i)]); L.append(bar)
            for e in range(2): read_v(L, i, e, after=[bar])
        else:
            for kb in range(2):
                for qb in range(NQ):
                    qk_chain(L, nb, kb, qb); n += 4
                    if i == 15 and kb == 0: rowmax(L, nb, qb)
                    if kb == 0 or qb < NQ - cfg.ndefer: softmax_quad(L, nb, kb, qb)
                    if i == 14 and kb == 1: read_q(L, qb, mg=n + 6 + 4 * qb)
                    if n == cfg.bar_pos:
                        bar = I("s_barrier", pin=True, waits=[('V', i), ('K', (i + 2) % 16)]); L.append(bar)
                        after_bar()
                if kb == 0:
                    for e in range(2): read_v(L, i, e, after=[bar])
        if i == 0 and variant != 'F':
            epilogue(L, range(cfg.epi_e15, 4), sOb, False)
        for e in range(2, 4): read_v(L, i, e, after=[bar])
        msum(L, cb, i == 0)
        for db in range(8):
            pv_db(L, cb, db, i == 0)
            if db == 3 and not last: read_k(L, (i + 2) % 16, 0, after=[bar], maxgap=92)
        if i == 15:
            epilogue(L, range(0, 4 if last else cfg.epi_e15), sOc, True)
            if last:
                for g in range(NQL): drain(L, g, sOc, after=W[g])
        return schedule(L, lat_lds=cfg.lat_lds, rate_scale=cfg.rate_scale)

    _iteration = iteration
    def stamp(slot_expr):
        return [I("s_memtime s[68:69]")] + [I(t) for t in slot_expr] + [I("s_waitcnt lgkmcnt(0)"), I("s_sub_u32 s68, s68, s64"),
                I(f"v_mov_b32 v{TM[0]}, s68"), I(f"buffer_store_dword v{TM[0]}, off, s[72:75], s70")]
    if cfg.stamps == 2:
        def iteration(i, variant=''):
            return stamp([f"s_lshl_b32 s70, s{sBlk}, 6", f"s_add_u32 s70, s70, s71", f"s_add_u32 s70, s70, {4*i}"]) + _iteration(i, variant)
    segs['it0F'] = iteration(0, 'F') + [I("s_branch L_it1")]
    for i in range(16):
        segs[f'it{i}'] = iteration(i)
    segs['it14'] += [I(f"s_cmp_eq_u32 s{sBlk}, 3"), I("s_cbranch_scc1 L_it15L")]
    adv = [f"s_mov_b32 s{sOb}, s{sOc}", f"s_mov_b32 s{sOc}, s{sQn}", f"s_mov_b32 s{sKVc}, s{sKVn}",
           f"s_add_u32 s{sBlk}, s{sBlk}, 1", f"s_lshl_b32 s{sBit}, s{sBit}, 1",
           f"s_add_u32 s{sKVn}, s{sKVn}, {16 << 17}", f"s_add_u32 s{sQn}, s{sQn}, {16*768*256}",
           f"s_cmp_eq_u32 s{sBlk}, 3",
           f"s_cselect_b32 s{sKVn}, 0x20000000, s{sKVn}", f"s_cselect_b32 s{sQn}, 0x20000000, s{sQn}",
           "s_branch L_it0"]
    segs['it15'] += [I(t) for t in adv]
    segs['it15L'] = iteration(15, 'L')

    path = ['pro', 'it0F'] + [f'it{i}' for i in range(1, 16)] + [f'it{i}' for i in range(16)] + \
           [f'it{i}' for i in range(15)] + ['it15L']
    st = WaitState(); reqs = {}
    for name in path:
        r = compute_waits(segs[name], st)
        reqs[name] = merge_req(reqs.get(name, {}), r)
    for name in reqs: segs[name] = insert_waits(segs[name], reqs[name])
    nn = 0
    for rep in range(2):
        for a, b in zip([None] + path[:-1], path):
            segs[b], k = fix_hazards(segs[b], history=segs[a][-30:] if a else ()); nn += k
    full = sum((segs[n] for n in path), [])
    bad = check_waits(full, WaitState()); assert not bad, bad[:5]
    bad = check_hazards(full); assert not bad, bad[:5]
    cnt = defaultdict(int)
    for i in range(16):
        for c in segs[f'it{i}']: cnt[c.kind] += 1
    print("per-block counts", dict(cnt), "nops inserted", nn, file=sys.stderr)

    out = [HEADER]
    T = lambda seg: [c.text for c in segs[seg]]
    out += T('pro') + T('it0F')
    out += [".p2align 6", "L_it0:"] + T('it0') + ["L_it1:"]
    for i in range(1, 16): out += [f"; ---- iteration {i}"] + T(f'it{i}')
    out += ["L_it15L:"] + T('it15L')
    fin = ["s_waitcnt vmcnt(0) lgkmcnt(0)"]
    if cfg.stamps:
        fin += ["s_memtime s[68:69]", "s_memrealtime s[70:71]", "s_waitcnt lgkmcnt(0)",
                "s_sub_u32 s68, s68, s64", "s_sub_u32 s70, s70, s66",
                f"s_lshl_b32 s3, s{sWave}, 4", "s_lshl_b32 s71, s2, 8", "s_add_u32 s3, s3, s71",
                "v_mov_b32 v36, s68", "v_mov_b32 v37, s70", "v_mov_b32 v38, s66", f"v_mov_b32 v39, s{sFlag}",
                "buffer_store_dwordx4 v[36:39], off, s[72:75], s3", "s_waitcnt vmcnt(0)"]
    out += fin
    out += ["L_end:", "s_endpgm", KD]
    return "\n".join(out) + "\n"

if __name__ == "__main__":
    cfg = Cfg()
    for a in sys.argv[2:]:
        k, v = a.split('='); setattr(cfg, k, eval(v))
    print(build(cfg), file=open(sys.argv[1], 'w'), end='')
```

```python
import re
from collections import defaultdict

REG_RE = re.compile(r'\b([vas])\[(\d+):(\d+)\]|\b([vas])(\d+)\b|\b(vcc|m0|exec|scc)\b')
TRANS = ('v_exp_f32', 'v_rcp_f32', 'v_log_f32', 'v_rsq_f32', 'v_sqrt_f32')

def regs_of(tok):
    out = []
    for m in REG_RE.finditer(tok):
        if m.group(1):
            out += [f"{m.group(1)}{i}" for i in range(int(m.group(2)), int(m.group(3)) + 1)]
        elif m.group(4):
            out.append(f"{m.group(4)}{m.group(5)}")
        else:
            out.append(m.group(6))
    return out

def split_ops(s):
    ops, depth, cur = [], 0, ''
    for ch in s:
        if ch == '[': depth += 1
        if ch == ']': depth -= 1
        if ch == ',' and depth == 0:
            ops.append(cur.strip()); cur = ''
        else:
            cur += ch
    if cur.strip(): ops.append(cur.strip())
    return ops

class I:
    __slots__ = ('text', 'mn', 'kind', 'rd', 'wr', 'cost', 'tag', 'waits', 'passes', 'srcc', 'ab',
                 'after', 'idx', 'pin', 'prio', 'preds', 'succs', 'asap', 'alap', 'gap', 'note', 'lat', 'mingap', 'maxgap', 'grp', 'glue')
    def __init__(self, text, tag=None, waits=None, after=(), pin=False, cost=None, note=None, mingap=None, maxgap=None, grp=None, glue=False):
        self.text = text
        self.tag = tag
        self.waits = waits
        self.after = list(after)
        self.pin = pin
        self.note = note
        self.mingap = mingap
        self.maxgap = maxgap
        self.grp = grp
        self.glue = glue
        self.lat = None
        parts = text.split(None, 1)
        mn = parts[0]
        self.mn = mn
        ops = split_ops(parts[1]) if len(parts) > 1 else []
        rd, wr = [], []
        self.passes = 0; self.srcc = []; self.ab = []
        if mn.endswith(':'):
            self.kind = 'label'
        elif mn == 'touch':
            self.kind = 'touch'
            rd = sum((regs_of(o) for o in ops), [])
        elif mn.startswith('v_mfma'):
            self.kind = 'mfma'
            self.passes = 4 if '16x16x32' in mn else 8
            wr = regs_of(ops[0]); self.ab = regs_of(ops[1]) + regs_of(ops[2]); self.srcc = regs_of(ops[3])
            rd = self.ab + self.srcc
        elif mn.startswith('v_cmp'):
            self.kind = 'valu'
            wr = regs_of(ops[0]); rd = sum((regs_of(o) for o in ops[1:]), [])
        elif mn.startswith('v_permlane') and 'swap' in mn:
            self.kind = 'valu'
            wr = regs_of(ops[0]) + regs_of(ops[1]); rd = list(wr)
        elif mn.startswith('v_'):
            self.kind = 'trans' if mn.replace('_e32', '').replace('_e64', '') in TRANS else 'valu'
            wr = regs_of(ops[0]); rd = sum((regs_of(o) for o in ops[1:]), [])
            if mn.startswith(('v_fmac', 'v_dot2c')): rd += wr
            if mn.startswith(('v_add_co', 'v_sub_co', 'v_addc_co')):
                wr += regs_of(ops[1]); rd = sum((regs_of(o) for o in ops[2:]), [])
        elif mn.startswith('ds_read'):
            self.kind = 'ldsr'
            wr = regs_of(ops[0]); rd = regs_of(ops[1])
        elif mn.startswith('ds_write'):
            self.kind = 'ldsw'
            rd = sum((regs_of(o) for o in ops), [])
        elif mn.startswith(('buffer_load', 'global_load')):
            if re.search(r'\blds\b', text) or 'load_lds' in mn:
                self.kind = 'dma'
                rd = sum((regs_of(o) for o in ops), []) + ['m0']
            else:
                self.kind = 'vload'
                wr = regs_of(ops[0]); rd = sum((regs_of(o) for o in ops[1:]), [])
        elif mn.startswith(('buffer_store', 'global_store')):
            self.kind = 'vstore'
            rd = sum((regs_of(o) for o in ops), [])
        elif mn == 's_waitcnt':
            self.kind = 'wait'
        elif mn == 's_barrier':
            self.kind = 'barrier'
        elif mn == 's_nop':
            self.kind = 'nop'
        elif mn.startswith(('s_cbranch', 's_branch', 's_endpgm')):
            self.kind = 'branch'
            if 'scc' in mn: rd = ['scc']
            if 'vcc' in mn: rd = ['vcc']
        elif mn.startswith(('s_load', 's_memtime', 's_memrealtime')):
            self.kind = 'smem'
            wr = regs_of(ops[0]); rd = sum((regs_of(o) for o in ops[1:]), [])
        elif mn.startswith('s_cmp'):
            self.kind = 'salu'
            wr = ['scc']; rd = sum((regs_of(o) for o in ops), [])
        elif mn.startswith('s_getpc'):
            self.kind = 'salu'; wr = regs_of(ops[0])
        elif mn.startswith('s_setprio'):
            self.kind = 'salu'
        elif mn.startswith('s_'):
            self.kind = 'salu'
            wr = regs_of(ops[0]); rd = sum((regs_of(o) for o in ops[1:]), [])
            if mn.startswith(('s_cselect', 's_addc', 's_subb')): rd.append('scc')
            if 'saveexec' in mn: wr.append('exec'); rd.append('exec')
            if mn.startswith(('s_addk', 's_mulk')): rd += regs_of(ops[0])
        else:
            raise ValueError("unknown instruction " + text)
        self.rd = rd; self.wr = wr
        if cost is None:
            cost = {'mfma': 8, 'trans': 8, 'valu': 4, 'ldsr': 12, 'ldsw': 28, 'dma': 24, 'vload': 24, 'vstore': 28,
                    'salu': 4, 'smem': 4, 'wait': 4, 'barrier': 4, 'nop': 4, 'branch': 4, 'label': 0, 'touch': 0}[self.kind]
        self.cost = cost
    def __repr__(self): return self.text

def is_valu(i): return i.kind in ('valu', 'trans')

def required_ws(p, c):
    need = 0
    pw = set(p.wr)
    if is_valu(p):
        vw = {r for r in pw if r[0] in 'va' and r not in ('vcc',)}
        sw = {r for r in pw if r[0] == 's' or r == 'vcc'}
        if c.kind == 'mfma' and vw & set(c.rd): need = max(need, 2)
        if c.mn.startswith('v_permlane') and vw & set(c.rd): need = max(need, 2)
        if c.mn.startswith(('v_readlane', 'v_readfirstlane')) and vw & set(c.rd): need = max(need, 1)
        if 'dpp' in c.text or 'row_' in c.text or 'quad_perm' in c.text:
            if vw & set(c.rd): need = max(need, 2)
        if p.kind == 'trans' and is_valu(c) and c.kind != 'trans' and vw & set(c.rd): need = max(need, 1)
        if ('sdwa' in p.text and 'dst_sel:DWORD' not in p.text) and is_valu(c) and vw & (set(c.rd) | set(c.wr)): need = max(need, 1)
        if sw:
            if is_valu(c) and sw & set(c.rd): need = max(need, 2)
            if c.kind in ('dma', 'vload', 'vstore') and sw & set(c.rd): need = max(need, 5)
            if c.kind == 'mfma' and sw & set(c.rd): need = max(need, 2)
        if 'exec' in pw and (c.kind == 'mfma'): need = max(need, 4)
    if p.kind == 'mfma':
        n = p.passes
        far = {4: 8, 8: 12}[n]
        if c.kind == 'mfma':
            if pw & set(c.ab): need = max(need, far)
            if pw & set(c.srcc):
                if list(p.wr) == list(c.srcc) and p.passes == c.passes: pass
                else: need = max(need, {4: 6, 8: 10}[n])
            elif pw & set(c.wr):
                need = max(need, {4: 6, 8: 10}[n])
        elif is_valu(c):
            if pw & (set(c.rd) | set(c.wr)): need = max(need, far)
            if set(p.srcc) & set(c.wr): need = max(need, {4: 3, 8: 7}[n])
        elif c.kind in ('ldsr', 'ldsw', 'dma', 'vload', 'vstore'):
            if pw & (set(c.rd) | set(c.wr)): need = max(need, far)
    if p.kind == 'salu' and 'm0' in pw and c.kind == 'dma': need = max(need, 1)
    if p.kind == 'vstore' and ('x4' in p.mn or 'x3' in p.mn):
        data = set(regs_of(split_ops(p.text.split(None, 1)[1])[0]))
        if data & set(c.wr): need = max(need, 2 if is_valu(c) else 1)
    return need

def ws_of(i):
    if i.kind in ('label', 'touch'): return 0
    if i.kind == 'nop': return int(i.text.split()[1]) + 1
    return 1

def fix_hazards(seq, history=()):
    out = list(history)
    nh = len(out)
    nins = 0
    for c in seq:
        if c.kind in ('label', 'nop', 'wait', 'touch'):
            out.append(c); continue
        dist = 0; pad = 0
        for p in reversed(out[-40:]):
            if dist >= 20: break
            need = required_ws(p, c)
            if need > dist: pad = max(pad, need - dist)
            dist += ws_of(p)
        while pad > 0:
            k = min(pad, 16)
            out.append(I(f"s_nop {k-1}")); pad -= k; nins += 1
        out.append(c)
    return out[nh:], nins

def check_hazards(seq):
    bad = []
    for n, c in enumerate(seq):
        if c.kind in ('label', 'nop', 'wait', 'touch'): continue
        dist = 0
        for p in reversed(seq[max(0, n-40):n]):
            if dist >= 20: break
            need = required_ws(p, c)
            if need > dist: bad.append((p.text, c.text, need, dist))
            dist += ws_of(p)
    return bad

class WaitState:
    def __init__(self):
        self.lds = []
        self.vm = []
    def copy(self):
        w = WaitState(); w.lds = list(self.lds); w.vm = list(self.vm); return w

def needed_waits(c, st):
    lg = None; vm = None
    touched = set(c.rd) | set(c.wr)
    for k, op in enumerate(st.lds):
        if op.kind == 'ldsr' and set(op.wr) & touched:
            k2 = k
            if op.grp is not None:
                for j in range(k, len(st.lds)):
                    if st.lds[j].grp == op.grp: k2 = j
            n = len(st.lds) - 1 - k2
            lg = n if lg is None else min(lg, n)
        if op.kind == 'smem' and set(op.wr) & touched:
            lg = 0
    for k, op in enumerate(st.vm):
        hit = False
        if op.kind == 'vload' and set(op.wr) & touched: hit = True
        if c.waits and op.tag is not None and op.tag in c.waits: hit = True
        if hit:
            n = len(st.vm) - 1 - k
            vm = n if vm is None else min(vm, n)
    if c.waits and 'LDSALL' in c.waits and st.lds: lg = 0
    if lg is not None and any(o.kind == 'smem' for o in st.lds): lg = 0
    return lg, vm

def apply_wait(st, lg, vm):
    if lg is not None:
        st.lds = st.lds[len(st.lds) - lg:] if lg > 0 else []
    if vm is not None:
        st.vm = st.vm[len(st.vm) - vm:] if vm > 0 else []

WAIT_RE_L = re.compile(r'lgkmcnt\((\d+)\)'); WAIT_RE_V = re.compile(r'vmcnt\((\d+)\)')
def step_state(st, c):
    if c.kind == 'wait':
        ml = WAIT_RE_L.search(c.text); mv = WAIT_RE_V.search(c.text)
        lg = int(ml.group(1)) if ml else None; vm = int(mv.group(1)) if mv else None
        if lg is not None and lg >= len(st.lds): lg = None
        if vm is not None and vm >= len(st.vm): vm = None
        apply_wait(st, lg, vm)
    elif c.kind in ('ldsr', 'ldsw', 'smem'):
        st.lds.append(c)
    elif c.kind in ('dma', 'vload', 'vstore'):
        st.vm.append(c)

def compute_waits(seq, st):
    req = {}
    for n, c in enumerate(seq):
        if c.kind not in ('wait', 'label', 'nop'):
            lg, vm = needed_waits(c, st)
            if lg is not None or vm is not None:
                if lg is not None: lg = min(lg, 15)
                if vm is not None: vm = min(vm, 63)
                req[n] = (lg, vm)
                apply_wait(st, lg, vm)
        step_state(st, c)
    return req

def merge_req(a, b):
    out = dict(a)
    for k, (lg, vm) in b.items():
        if k in out:
            l0, v0 = out[k]
            lg = l0 if lg is None else (lg if l0 is None else min(lg, l0))
            vm = v0 if vm is None else (vm if v0 is None else min(vm, v0))
        out[k] = (lg, vm)
    return out

def insert_waits(seq, req):
    out = []
    for n, c in enumerate(seq):
        if n in req:
            lg, vm = req[n]
            t = 's_waitcnt'
            if vm is not None: t += f" vmcnt({vm})"
            if lg is not None: t += f" lgkmcnt({lg})"
            out.append(I(t))
        out.append(c)
    return out

def check_waits(seq, st):
    bad = []
    for n, c in enumerate(seq):
        if c.kind not in ('wait', 'label', 'nop'):
            lg, vm = needed_waits(c, st)
            if lg is not None or vm is not None: bad.append((n, c.text, lg, vm))
            apply_wait(st, lg, vm)
        step_state(st, c)
    return bad

class Unit:
    def __init__(self, members):
        self.members = members
        f = members[0]
        self.kind = f.kind if all(m.kind == f.kind for m in members) else members[-1].kind
        self.mn = members[-1].mn; self.text = " ; ".join(m.text for m in members)
        self.rd = sum((m.rd for m in members), []); self.wr = sum((m.wr for m in members), [])
        self.after = sum((m.after for m in members), []); self.pin = False
        self.srcc = []; self.ab = []; self.passes = 0; self.lat = f.lat
        mn_ = [m.mingap for m in members if m.mingap is not None]; mx_ = [m.maxgap for m in members if m.maxgap is not None]
        self.mingap = max(mn_) if mn_ else None; self.maxgap = min(mx_) if mx_ else None
        if any(m.kind == 'ldsr' for m in members): self.kind = 'ldsr'
        if all(m.kind == 'ldsr' for m in members): self.cost = 12 + 4 * (len(members) - 1)
        else:
            c = 0; seen = False
            for m in members:
                if m.kind in ('ldsr', 'dma', 'vstore', 'ldsw', 'vload'):
                    c += ({'ldsr': 4, 'dma': 8, 'vstore': 28, 'ldsw': 20, 'vload': 8}[m.kind] if seen else {'ldsr': 12, 'dma': 24, 'vstore': 28, 'ldsw': 28, 'vload': 24}[m.kind])
                    seen = True
                elif m.kind in ('salu', 'wait', 'nop') and not seen: pass
                else: c += m.cost
            self.cost = c
def make_units(prog):
    out = []; umap = {}
    for i in prog:
        if i.glue and out:
            prev = out[-1]
            mem = (prev.members if isinstance(prev, Unit) else [prev]) + [i]
            out[-1] = Unit(mem)
        else:
            out.append(i)
    for u in out:
        if isinstance(u, Unit):
            for m in u.members: umap[id(m)] = u
    for u in out:
        u.after = [umap.get(id(p), p) for p in u.after]
    return out

def schedule(prog, lat_lds=7, lat_mfma_valu=None, rate_scale=1.0, verbose=False, min_rate=None):
    prog = make_units(prog)
    for n, i in enumerate(prog):
        i.idx = n; i.preds = []; i.succs = []
    lastw = {}; readers = defaultdict(list)
    def edge(p, c, lat):
        if p is c: return
        c.preds.append((p, lat)); p.succs.append((c, lat))
    bb = [i for i in prog if i.kind == 'mfma' or i.pin]
    for g, i in enumerate(bb): i.gap = g
    isbb = lambda i: i.kind == 'mfma' or i.pin
    def lat_of(p, c, typ):
        if typ == 'raw':
            if p.kind == 'mfma':
                if c.kind == 'mfma' and list(p.wr) == list(c.srcc) and not (set(p.wr) & set(c.ab)): return 0
                return lat_mfma_valu if lat_mfma_valu is not None else (5 if p.passes == 4 else 4)
            if p.kind == 'ldsr': return lat_lds if True else 0
            if p.kind == 'vload': return p.lat if getattr(p, 'lat', None) else 60
            if is_valu(p) and c.kind == 'mfma': return 1
            return 0
        if typ == 'waw':
            if p.kind == 'mfma' and c.kind != 'mfma': return 5 if p.passes == 4 else 4
            return 0
        if typ == 'war':
            if p.kind == 'mfma' and is_valu(c) and set(p.srcc) & set(c.wr): return 2
            return 0
    lastlds = None; lastvm = None
    for i in prog:
        for r in i.rd:
            if r in lastw: edge(lastw[r], i, lat_of(lastw[r], i, 'raw'))
        for r in i.wr:
            if r in lastw: edge(lastw[r], i, lat_of(lastw[r], i, 'waw'))
            for q in readers[r]: edge(q, i, lat_of(q, i, 'war'))
        for p in i.after: edge(p, i, 0)
        for r in i.rd: readers[r].append(i)
        for r in i.wr:
            lastw[r] = i; readers[r] = []
    nb = len(bb)
    for i in prog:
        if isbb(i): i.asap = i.gap; continue
        a = -1
        for p, lat in i.preds:
            a = max(a, (p.gap if isbb(p) else p.asap) + lat)
        if i.mingap is not None: a = max(a, i.mingap)
        i.asap = min(a, nb - 1)
    for i in reversed(prog):
        if isbb(i): i.alap = i.gap; continue
        a = nb - 1
        for s, lat in i.succs:
            if isbb(s): a = min(a, s.gap - 1 - max(lat - 1, 0) if lat > 0 else s.gap - 1)
            else: a = min(a, s.alap - lat)
        if i.maxgap is not None: a = min(a, i.maxgap)
        i.alap = max(a, i.asap)
    fillers = [i for i in prog if not isbb(i)]
    total = sum(i.cost for i in fillers)
    rate = total / max(nb, 1) * rate_scale
    if min_rate is not None: rate = max(rate, min_rate)
    placed = set(); out = []
    import heapq
    npred = {id(i): sum(1 for p, _ in i.preds if not isbb(p)) for i in fillers}
    readyat = {id(i): max([-1] + [p.gap + lat for p, lat in i.preds if isbb(p)] + ([i.mingap] if i.mingap is not None else [])) for i in fillers}
    avail = [i for i in fillers if npred[id(i)] == 0]
    remaining = float(total)
    floor = 8.0 if any(b.kind == 'mfma' and b.passes == 4 for b in bb) else 24.0
    for g in range(-1, nb):
        if g >= 0:
            out.append(bb[g])
        gaps_left = nb - max(g, 0)
        target = max(floor, remaining / gaps_left * rate_scale) if g >= 0 else 0
        if g >= 0 and bb[g].kind != 'mfma': target = 0
        used = 0.0
        while True:
            cand = [i for i in avail if readyat[id(i)] <= g or i.alap <= g]
            if not cand: break
            cand.sort(key=lambda i: (i.alap, i.idx))
            i = cand[0]
            forced = i.alap <= g or g == nb - 1
            if not forced:
                room = target - used
                if room < 2: break
                if i.cost > room + 2 and used > 0:
                    alt = [j for j in cand[1:12] if j.cost <= room + 2]
                    if not alt: break
                    i = alt[0]
            avail.remove(i); out.append(i); i.gap = g; used += i.cost; remaining -= i.cost
            for s, lat in i.succs:
                if not isbb(s):
                    npred[id(s)] -= 1
                    readyat[id(s)] = max(readyat[id(s)], g + lat)
                    if npred[id(s)] == 0: avail.append(s)
    assert len(out) == len(prog), (len(out), len(prog))
    pos = {id(i): n for n, i in enumerate(out)}
    for i in prog:
        for p, _ in i.preds:
            assert pos[id(p)] < pos[id(i)], ("dep violated", p.text, i.text)
    flat = []
    for i in out:
        flat += i.members if isinstance(i, Unit) else [i]
    return flat
```

```python
import sys, struct
from fw import *

HEADER = """; Kernarg layout for this problem (48 bytes, ptrs only, base s[0:1]):
; @launch grid=(256,1,1) block=(256,1,1) lds=163840
.amdgcn_target "amdgcn-amd-amdhsa--gfx950"
.text
.globl standalone__mha_softmax__near_ridge_kernel
.p2align 8
.type standalone__mha_softmax__near_ridge_kernel,@function
standalone__mha_softmax__near_ridge_kernel:"""

KD = """.section .rodata,"a"
.p2align 6
.amdhsa_kernel standalone__mha_softmax__near_ridge_kernel
  .amdhsa_next_free_vgpr 512
  .amdhsa_next_free_sgpr 102
  .amdhsa_accum_offset 256
  .amdhsa_group_segment_fixed_size 0
  .amdhsa_kernarg_size 48
  .amdhsa_user_sgpr_count 2
  .amdhsa_user_sgpr_kernarg_segment_ptr 1
  .amdhsa_system_sgpr_workgroup_id_x 1
.end_amdhsa_kernel"""

def rng(f, b, n): return f"{f}[{b}:{b+n-1}]"
def f32(x): return "0x%08x" % struct.unpack("<I", struct.pack("<f", x))[0]
MF = "v_mfma_f32_16x16x32_bf16"

class Cfg:
    NQ = 6
    NKS = 4; NVS = 4
    NQL = 5
    KP = 1088; VP = 1032
    bar_pos = 12
    lat_lds = 8
    stamps = False
    thr = 2.0 ** 40
    rate_scale = 1.0
    ndefer = 2
    qdma_it = (3, 5, 7, 9, 11, 12)
    drain_it = (1, 2, 4, 6, 8)
    nt_q = True
    nt_o = False
    nt_kv = True
    codepf = True
    qswz = True
    npre = 2
    dma_pair = False
    dma_sp = 3
    pos = dict(drd=6, dk=14, dv=36, dq=64, v1=30, v3=56)
    epi_e15 = 1

def build(cfg):
    NQ = cfg.NQ; KP = cfg.KP; VP = cfg.VP
    KS = 8 * KP; VS = 8 * VP
    KB0 = 0; VB0 = cfg.NKS * KS; QB0 = VB0 + cfg.NVS * VS
    QB0 = (QB0 + 15) // 16 * 16
    NQL = cfg.NQL
    assert QB0 + 4 * NQL * 4096 <= 163840, QB0
    vKrd, vV0, voffK, voffV, vQrd, vOst = 1, 2, 6, 7, 8, 9
    vVrd = [2, 3, 4, 5]
    RINV = [10, 11]
    TM = [12, 13]
    NM = [14 + q for q in range(NQ)]
    TP = [20, 24]
    TA = 28
    QA = [TA + s for s in range(4)]
    S = [[32 + (b * NQ + q) * 8 for q in range(NQ)] for b in range(2)]
    NOV = 4
    O = [('v', 128 + 32 * q) for q in range(NOV)]
    FR = [4 * i for i in range(8)]
    Q = [32 + 16 * q for q in range(NQ)]
    ONES = 128
    LS = [132 + 4 * q for q in range(NQ)]
    O += [('a', 156 + 32 * q) for q in range(NQ - NOV)]
    QX = {q: 220 + 16 * (q - NQL) for q in range(NQL, NQ)}
    sQ, sK, sV, sO = 12, 16, 20, 24
    sWave = 30; sC = 31; sKVc = 32; sKVn = 33; sQn = 34; sOc = 35; sOp = 36; sKw = 37; sVw = 38; sQw = 39
    sT = 40; sT2 = 41; sBlk = 42; sFlag = 43; sThr = 44; sOb = 45; sOn = 46; sBit = 47
    c_scale = (128 ** -0.5) * 1.4426950408889634

    segs = {}
    NTKV = ' nt' if cfg.nt_kv else ''
    pro = []
    P = lambda t, **k: (pro.append(I(t, **k)), pro[-1])[1]
    P("s_cmp_ge_u32 s2, 256"); P("s_cbranch_scc1 L_end")
    P("s_load_dwordx4 s[4:7], s[0:1], 0"); P("s_load_dwordx4 s[8:11], s[0:1], 16")
    if cfg.stamps:
        P("s_load_dwordx2 s[60:61], s[0:1], 40"); P("s_memtime s[64:65]"); P("s_memrealtime s[66:67]")
    P("v_and_b32 v32, 63, v0")
    P("v_lshrrev_b32 v33, 6, v0")
    P("v_lshrrev_b32 v34, 4, v32")
    P("v_readfirstlane_b32 s30, v33")
    P("v_and_b32 v35, 15, v32")
    if cfg.codepf:
        P("s_getpc_b64 s[48:49]")
        P("L_pc:")
        P("s_bfe_u32 s50, s2, 0x20003"); P("s_mul_i32 s50, s50, 12288")
        P("v_mul_u32_u24 v40, 3072, v33"); P("v_lshl_add_u32 v40, v32, 4, v40"); P("v_add_u32 v40, s50, v40")
        for j in range(3):
            P(f"v_add_u32 v41, {1024*j}, v40"); P("v_min_u32 v41, (L_main_end-L_pc-16), v41")
            P(f"global_load_dwordx4 v[{44+4*j}:{47+4*j}], v41, s[48:49]")
    P("v_xor_b32 v36, v35, v34"); P("v_lshlrev_b32 v36, 4, v36"); P(f"v_lshl_add_u32 v{voffK}, v34, 8, v36")
    P("v_lshlrev_b32 v36, 2, v34"); P("v_xor_b32 v36, v35, v36"); P("v_lshlrev_b32 v36, 4, v36"); P(f"v_lshl_add_u32 v{voffV}, v34, 8, v36")
    P("v_lshrrev_b32 v36, 2, v35")
    P("v_and_b32 v37, 3, v35")
    P("v_xor_b32 v38, v37, v34"); P("v_lshlrev_b32 v38, 4, v38"); P("v_lshl_add_u32 v38, v37, 8, v38")
    P(f"v_mul_u32_u24 v39, {KP}, v36"); P(f"v_add_u32 v{vKrd}, v39, v38")
    P("v_lshl_add_u32 v38, v36, 10, v38")
    P(f"v_mul_u32_u24 v39, {NQL*4096}, v33"); P("v_add_u32 v38, v38, v39"); P(f"v_add_u32 v{vQrd}, {QB0}, v38")
    P(f"v_mul_u32_u24 v38, {VP}, v34"); P("v_lshl_add_u32 v38, v36, 8, v38"); P("v_lshl_add_u32 v38, v37, 4, v38")
    P(f"v_add_u32 v38, {VB0}, v38")
    for e in range(4):
        P(f"v_xor_b32 v39, {e}, v36"); P(f"v_lshl_add_u32 v{vVrd[e]}, v39, 6, v38")
    P("v_lshlrev_b32 v38, 4, v34"); P(f"v_lshl_add_u32 v{vOst}, v35, 8, v38")
    P(f"v_mul_u32_u24 v39, {NQL*4096}, v33"); P("v_lshl_add_u32 v39, v32, 4, v39"); P(f"v_add_u32 v0, {QB0}, v39")
    P("v_mov_b32 v38, 0x3f803f80")
    for r in range(4): P(f"v_accvgpr_write_b32 a{ONES+r}, v38")
    P("s_waitcnt lgkmcnt(0)")
    for base, src, n in ((sQ, 4, 0x6000000), (sK, 6, 0x4000000), (sV, 8, 0x4000000), (sO, 10, 0x6000000)):
        P(f"s_mov_b32 s{base}, s{src}"); P(f"s_mov_b32 s{base+1}, s{src+1}")
        P(f"s_mov_b32 s{base+2}, {n}"); P(f"s_mov_b32 s{base+3}, 0x20000")
    if cfg.stamps:
        for t in ("s_mov_b32 s72, s60", "s_mov_b32 s73, s61", "s_mov_b32 s74, 0x1000000", "s_mov_b32 s75, 0x20000",
                  "s_lshl_b32 s71, s2, 2", f"s_add_u32 s71, s71, s{sWave}", "s_lshl_b32 s71, s71, 9", "s_add_u32 s71, s71, 0x100000"): P(t)
    P(f"s_mov_b32 s{sC}, {f32(c_scale)}"); P(f"s_mov_b32 s{sThr}, {f32(cfg.thr)}")
    P("s_and_b32 s4, s2, 7"); P("s_lshl_b32 s4, s4, 6"); P("s_lshr_b32 s5, s2, 4"); P("s_add_u32 s4, s4, s5")
    P("s_bfe_u32 s5, s2, 0x10003")
    P(f"s_lshl_b32 s6, s{sWave}, 11")
    P(f"s_lshl_b32 s{sKVc}, s4, 17"); P(f"s_add_u32 s{sKVc}, s{sKVc}, s6")
    P(f"s_add_u32 s{sKVn}, s{sKVc}, {16 << 17}")
    P("s_mul_i32 s6, s4, 768"); P("s_mul_i32 s7, s5, 384"); P("s_add_u32 s6, s6, s7")
    P(f"s_mul_i32 s7, s{sWave}, 96"); P("s_add_u32 s6, s6, s7"); P(f"s_lshl_b32 s{sOc}, s6, 8")
    P(f"s_mov_b32 s{sOb}, 0x20000000")
    P(f"s_add_u32 s{sQn}, s{sOc}, {16*768*256}")
    P(f"s_mul_i32 s{sKw}, s{sWave}, {2*KP}")
    P(f"s_mul_i32 s{sVw}, s{sWave}, {2*VP}"); P(f"s_add_u32 s{sVw}, s{sVw}, {VB0}")
    P(f"s_mul_i32 s{sQw}, s{sWave}, {NQL*4096}"); P(f"s_add_u32 s{sQw}, s{sQw}, {QB0}")
    P(f"s_mov_b32 s{sBlk}, 0"); P(f"s_mov_b32 s{sFlag}, 0"); P(f"s_mov_b32 s{sBit}, 1")

    def dma_kv(L, which, tile, nxt, after=(), mg=None):
        srd, sw, voff, base, SZ, PIT, NS = ((sK, sKw, voffK, KB0, KS, KP, cfg.NKS) if which == 'K'
                                            else (sV, sVw, voffV, 0, VS, VP, cfg.NVS))
        gt = tile + (16 if nxt else 0)
        slot = slot_of(which, tile, nxt)
        tag = (which, tile)
        a = list(after)
        L.append(I(f"s_add_u32 m0, s{sw}, {base + slot*SZ}", after=a))
        L.append(I(f"s_add_u32 s{sT}, s{sKVn if nxt else sKVc}, {tile*8192}", after=a))
        L.append(I(f"buffer_load_dwordx4 v{voff}, s[{srd}:{srd+3}], s{sT} offen{NTKV} lds", tag=tag, after=a, maxgap=mg))
        L.append(I(f"s_add_u32 m0, s{sw}, {base + slot*SZ + PIT - 1024}", after=a))
        L.append(I(f"buffer_load_dwordx4 v{voff}, s[{srd}:{srd+3}], s{sT} offen offset:1024{NTKV} lds", tag=tag, after=a, maxgap=mg + 2 if mg else None))
    def slot_of(which, tile, nxt=False):
        return tile % (cfg.NKS if which == 'K' else cfg.NVS)
    def dma_q(L, grp, sbase, after=(), direct=False, **kw):
        a = list(after)
        L.append(I(f"s_add_u32 s{sT2}, s{sbase}, {grp*4096}", after=a, **kw))
        if grp >= NQL:
            dst = Q[grp] if direct else QX[grp]
            for j in range(4):
                L.append(I(f"buffer_load_dwordx4 {rng('a', dst+4*j, 4)}, v{vOst}, s[{sQ}:{sQ+3}], s{sT2} offen offset:{64*j}{' nt' if cfg.nt_q else ''}", after=a, **kw))
                L[-1].lat = 1
            return
        L.append(I(f"s_add_u32 m0, s{sQw}, {grp*4096}", after=a, **kw))
        for j in range(4):
            vo = voffK
            if cfg.qswz and j:
                vo = TM[j % 2]
                L.append(I(f"v_xor_b32 v{vo}, {64*j}, v{voffK}", after=a, **kw))
            L.append(I(f"buffer_load_dwordx4 v{vo}, s[{sQ}:{sQ+3}], s{sT2} offen offset:{1024*j}{' nt' if cfg.nt_q else ''} lds", tag=('Q', grp), after=a, **kw))
    gid = [0]
    def read_k(L, tile, kb, after=(), maxgap=None):
        gid[0] += 1
        for s in range(4):
            L.append(I(f"ds_read_b128 {rng('a', FR[4*kb+s], 4)}, v{vKrd} offset:{KB0 + slot_of('K', tile)*KS + kb*4*KP + 64*s}",
                       after=list(after), grp=gid[0], glue=(s > 0), maxgap=maxgap))
    def read_v(L, tile, e, after=()):
        gid[0] += 1
        for o in range(2):
            for u in range(2):
                L.append(I(f"ds_read_b64_tr_b16 {rng('a', FR[2*e+o] + 2*u, 2)}, v{vVrd[e]} offset:{slot_of('V', tile)*VS + u*4*VP + 8*o}",
                           after=list(after), grp=gid[0], glue=(o + u > 0)))
    def read_q(L, qb, direct=False, mg=None, after=()):
        gid[0] += 1
        if qb >= NQL:
            if not direct:
                for r in range(16): L.append(I(f"v_accvgpr_mov_b32 a{Q[qb]+r}, a{QX[qb]+r}", maxgap=mg))
            return
        if cfg.qswz and qb == 0:
            L.append(I(f"v_mbcnt_lo_u32_b32 v{QA[0]}, -1, 0")); L.append(I(f"v_mbcnt_hi_u32_b32 v{QA[0]}, -1, v{QA[0]}"))
            L.append(I(f"v_bfe_u32 v{QA[0]}, v{QA[0]}, 2, 2")); L.append(I(f"v_lshl_add_u32 v{QA[0]}, v{QA[0]}, 6, v{vQrd}"))
            for s in range(1, 4): L.append(I(f"v_xor_b32 v{QA[s]}, {64*s}, v{QA[0]}"))
        for s in range(4):
            ad = f"v{QA[s]} offset:{qb*4096}" if cfg.qswz else f"v{vQrd} offset:{qb*4096 + 64*s}"
            L.append(I(f"ds_read_b128 {rng('a', Q[qb]+4*s, 4)}, {ad}",
                       grp=gid[0], glue=(s > 0), waits=[('Q', qb)] if s == 0 else None, maxgap=mg, after=list(after)))
    def qk_chain(L, buf, kb, qb):
        d = rng('v', S[buf][qb] + 4 * kb, 4)
        for s in range(4):
            L.append(I(f"{MF} {d}, {rng('a', FR[4*kb+s], 4)}, {rng('a', Q[qb]+4*s, 4)}, {d if s else '0'}"))
    def softmax_quad(L, buf, kb, qb):
        b = S[buf][qb] + 4 * kb; pb = S[buf][qb] + 2 * kb
        for k in range(4): L.append(I(f"v_fma_f32 v{b+k}, v{b+k}, s{sC}, v{NM[qb]}"))
        for k in range(4): L.append(I(f"v_exp_f32 v{b+k}, v{b+k}"))
        L.append(I(f"v_cvt_pk_bf16_f32 v{pb}, v{b}, v{b+1}"))
        L.append(I(f"v_cvt_pk_bf16_f32 v{pb+1}, v{b+2}, v{b+3}"))
    def rowmax(L, buf, qb):
        b = S[buf][qb]; t, u = TM
        L.append(I(f"v_max3_f32 v{t}, v{b}, v{b+1}, v{b+2}"))
        L.append(I(f"v_max_f32 v{t}, v{t}, v{b+3}"))
        L.append(I(f"v_mov_b32 v{u}, v{t}"))
        L.append(I(f"v_permlane32_swap_b32 v{t}, v{u}"))
        L.append(I(f"v_max_f32 v{t}, v{t}, v{u}"))
        L.append(I(f"v_mov_b32 v{u}, v{t}"))
        L.append(I(f"v_permlane16_swap_b32 v{t}, v{u}"))
        L.append(I(f"v_max_f32 v{t}, v{t}, v{u}"))
        L.append(I(f"v_mul_f32 v{NM[qb]}, -v{t}, s{sC}"))
    def msum(L, buf, first):
        for qb in range(NQ):
            d = rng('a', LS[qb], 4)
            L.append(I(f"{MF} {d}, {rng('a', ONES, 4)}, {rng('v', S[buf][qb], 4)}, {'0' if first else d}"))
    def pv_db(L, buf, db, first):
        for qb in range(NQ):
            d = rng(O[qb][0], O[qb][1] + 4 * db, 4)
            L.append(I(f"{MF} {d}, {rng('a', FR[db], 4)}, {rng('v', S[buf][qb], 4)}, {'0' if first else d}"))
    tpi = [0]
    def epi_l(L, sbit_update=True):
        pass
    def epi_unit(L, qb, e, sbase):
        f, b = O[qb]; tp = TP[tpi[0] % 2]; tpi[0] += 1
        ri = RINV[qb % 2]
        for o in range(2):
            base = b + 4 * (2 * e + o)
            if f == 'v':
                for r in range(4): L.append(I(f"v_mul_f32 v{base+r}, v{base+r}, v{ri}"))
                src = base
            else:
                for r in range(4): L.append(I(f"v_accvgpr_read_b32 v{TA+r}, a{base+r}"))
                for r in range(4): L.append(I(f"v_mul_f32 v{TA+r}, v{TA+r}, v{ri}"))
                src = TA
            L.append(I(f"v_cvt_pk_bf16_f32 v{tp+2*o}, v{src}, v{src+1}"))
            L.append(I(f"v_cvt_pk_bf16_f32 v{tp+2*o+1}, v{src+2}, v{src+3}"))
        if qb < NQL:
            L.append(I(f"ds_write_b128 v{vQrd}, {rng('v', tp, 4)} offset:{qb*4096 + 64*e}"))
            W[qb].append(L[-1])
        else:
            L.append(I(f"s_add_u32 s{sOp}, s{sbase}, {qb*4096}"))
            L.append(I(f"buffer_store_dwordx4 {rng('v', tp, 4)}, v{vOst}, s[{sO}:{sO+3}], s{sOp} offen offset:{64*e}{' nt' if cfg.nt_o else ''}", tag=('O',)))
    W = defaultdict(list)
    DT = [TP[0], TP[1], TA]
    def drain(L, qb, sbase, after=()):
        st = []
        L.append(I(f"s_add_u32 s{sOp}, s{sbase}, {qb*4096}"))
        for j in range(4):
            t = DT[tpi[0] % 3]; tpi[0] += 1
            L.append(I(f"ds_read_b128 {rng('v', t, 4)}, v0 offset:{qb*4096 + 1024*j}", after=list(after)))
            L.append(I(f"buffer_store_dwordx4 {rng('v', t, 4)}, v{voffK}, s[{sO}:{sO+3}], s{sOp} offen offset:{1024*j}{' nt' if cfg.nt_o else ''}", tag=('O',)))
            st.append(L[-1])
        return st
    def epi_rinv(L, qb, check):
        ri = RINV[qb % 2]
        L.append(I(f"v_accvgpr_read_b32 v{ri}, a{LS[qb]}"))
        if check:
            L.append(I(f"v_cmp_nge_f32 vcc, s{sThr}, v{ri}"))
            L.append(I(f"s_cmp_lg_u64 vcc, 0"))
            L.append(I(f"s_cselect_b32 s{sOn}, s{sBit}, 0", glue=True))
            L.append(I(f"s_or_b32 s{sFlag}, s{sFlag}, s{sOn}"))
        L.append(I(f"v_rcp_f32 v{ri}, v{ri}"))
    def epilogue(L, es, sbase, check):
        for qb in range(NQ):
            epi_rinv(L, qb, check)
            for e in es: epi_unit(L, qb, e, sbase)

    def glue0(L, start, gap):
        for k, x in enumerate(L[start:]):
            x.glue = k > 0; x.mingap = gap; x.maxgap = gap
    def pstamp(k):
        if cfg.stamps == 2:
            for t in ("s_memtime s[68:69]", f"s_add_u32 s70, s71, {256 + 4*k}", "s_waitcnt lgkmcnt(0)", "s_sub_u32 s68, s68, s64",
                      f"v_mov_b32 v{TM[0]}, s68", f"buffer_store_dword v{TM[0]}, off, s[72:75], s70"): P(t)
    pstamp(0)
    dma_kv(pro, 'K', 0, False)
    npre = cfg.npre
    dma_q(pro, 0, sOc, direct=True)
    dma_kv(pro, 'K', 1, False)
    for g in range(1, npre): dma_q(pro, g, sOc, direct=True)
    pstamp(1)
    P("s_barrier", waits=[('K', 0)])
    pstamp(2)
    p2 = []
    read_k(p2, 0, 0); read_k(p2, 0, 1)
    late = [('V', 0), ('K', 2), ('V', 1), ('K', 3), ('V', 2)]
    for kb in range(2):
        for qb in range(NQ):
            if kb == 0:
                if qb + npre < NQ:
                    st = len(p2); dma_q(p2, qb + npre, sOc, direct=True); glue0(p2, st, max(4 * qb - 1, -1))
                read_q(p2, qb, direct=True, after=[x for x in p2 if x.tag == ('Q', qb)])
            qk_chain(p2, 0, kb, qb)
            if kb == 0: rowmax(p2, 0, qb)
            if kb == 1 and qb < len(late):
                st = len(p2); w, t = late[qb]; dma_kv(p2, w, t, False); glue0(p2, st, 24 + 4 * qb)
            if kb == 0 or qb < NQ - cfg.ndefer: softmax_quad(p2, 0, kb, qb)
    b2 = I("s_barrier", pin=True, waits=[('K', 1)]); p2.append(b2)
    read_k(p2, 1, 0, after=[b2])
    pro += schedule(p2, lat_lds=cfg.lat_lds)
    pstamp(3)
    segs['pro'] = pro

    def glue(L, start, gap=None):
        for k, x in enumerate(L[start:]):
            x.glue = k > 0
            if gap is not None: x.mingap = gap; x.maxgap = gap
    def fill_m0(L, start):
        seg = L[start:]
        k = 0
        while k + 1 < len(seg):
            if 'm0' in seg[k].wr and seg[k+1].kind == 'dma':
                j = next((x for x in range(k + 2, len(seg)) if seg[x].kind == 'ldsr'), None)
                if j is not None:
                    seg.insert(k + 1, seg.pop(j))
            k += 1
        L[start:] = seg
    def touch(L, lo):
        L.append(I(f"touch {rng('a', FR[lo], 16)}"))
    def drain_rd(L, qb, j, t):
        L.append(I(f"ds_read_b128 {rng('v', t, 4)}, v0 offset:{qb*4096 + 1024*j}"))
    def drain_st(L, qb, j, t, sbase):
        L.append(I(f"s_add_u32 s{sOp}, s{sbase}, {qb*4096}"))
        L.append(I(f"buffer_store_dwordx4 {rng('v', t, 4)}, v{voffK}, s[{sO}:{sO+3}], s{sOp} offen offset:{1024*j}{' nt' if cfg.nt_o else ''}", tag=('O',)))
    def iteration(i, variant=''):
        L = []
        nt = (i + 1) % 16; nb = (i + 1) % 2; cb = i % 2
        last = (variant == 'L')
        W.clear()
        dq = [g for g in range(NQL) if cfg.drain_it[g] == i]
        qq = [g for g in range(NQ) if cfg.qdma_it[g] == i]
        dq = dq[0] if dq else None; qq = qq[0] if qq else None
        if last:
            for qb in range(NQ - cfg.ndefer, NQ): softmax_quad(L, cb, 1, qb)
            bar = I("s_barrier", pin=True, waits=[('V', i)]); L.append(bar)
            for e in range(4): read_v(L, i, e, after=[bar])
            msum(L, cb, False)
            for qb in range(NQ):
                for db in range(8):
                    d = rng(O[qb][0], O[qb][1] + 4 * db, 4)
                    L.append(I(f"{MF} {d}, {rng('a', FR[db], 4)}, {rng('v', S[cb][qb], 4)}, {d}"))
                epi_rinv(L, qb, True)
                for e in range(4): epi_unit(L, qb, e, sOc)
                if qb < NQL: drain(L, qb, sOc, after=W[qb])
            return schedule(L, lat_lds=cfg.lat_lds, rate_scale=cfg.rate_scale)
        G = cfg.pos
        st = len(L); touch(L, 0); read_k(L, nt, 1)
        glue(L, st, -1)
        if dq is not None:
            st = len(L)
            for j in range(3): drain_rd(L, dq, j, DT[j])
            glue(L, st, G['drd'])
        for qb in range(NQ - cfg.ndefer, NQ): softmax_quad(L, cb, 1, qb)
        if qq is not None and qq < NQL and cfg.qswz:
            XT = [TM[0], TM[1], TA]
            for j in range(1, 4): L.append(I(f"v_xor_b32 v{XT[j-1]}, {64*j}, v{voffK}"))
        n = 0
        for kb in range(2):
            for qb in range(NQ):
                qk_chain(L, nb, kb, qb); n += 4
                if i == 15 and kb == 0: rowmax(L, nb, qb)
                if kb == 0 or qb < NQ - cfg.ndefer: softmax_quad(L, nb, kb, qb)
                if i == 14 and kb == 1: read_q(L, qb, mg=25 + 4 * qb + 10 + 4 * qb)
                if n == cfg.bar_pos:
                    bar = I("s_barrier", pin=True, waits=[('V', i), ('K', (i + 2) % 16)]); L.append(bar)
                    for which, t, g0 in (('K', i + 4, G['dk']), ('V', i + 3, G['dv'])):
                        st = len(L); dma_kv(L, which, t % 16, t >= 16, after=[bar])
                        if cfg.dma_pair: glue(L, st, g0)
                        else:
                            tail = L[st + 3:]; del L[st + 3:]
                            glue(L, st, g0); st = len(L); L.extend(tail); glue(L, st, g0 + cfg.dma_sp)
                    if qq is not None:
                        st = len(L)
                        ntq = ' nt' if cfg.nt_q else ''
                        if qq < NQL: L.append(I(f"s_add_u32 m0, s{sQw}, {qq*4096}"))
                        L.append(I(f"s_add_u32 s{sT2}, s{sQn}, {qq*4096}"))
                        for j in range(4):
                            if qq < NQL:
                                vo = XT[j-1] if (j and cfg.qswz) else voffK
                                L.append(I(f"buffer_load_dwordx4 v{vo}, s[{sQ}:{sQ+3}], s{sT2} offen offset:{1024*j}{ntq} lds", tag=('Q', qq)))
                            else:
                                L.append(I(f"buffer_load_dwordx4 {rng('a', QX[qq]+4*j, 4)}, v{vOst}, s[{sQ}:{sQ+3}], s{sT2} offen offset:{64*j}{ntq}"))
                        glue(L, st, G['dq'])
            if kb == 0:
                st = len(L); touch(L, 4)
                if dq is not None: drain_st(L, dq, 0, DT[0], sOb)
                read_v(L, i, 0, after=[bar]); glue(L, st, 24)
                st = len(L)
                if dq is not None: drain_st(L, dq, 1, DT[1], sOb)
                read_v(L, i, 1, after=[bar])
                if dq is not None: drain_rd(L, dq, 3, DT[0])
                glue(L, st, G['v1'])
        if i == 0 and variant != 'F':
            epilogue(L, range(cfg.epi_e15, 4), sOb, False)
        st = len(L); touch(L, 0)
        if dq is not None: drain_st(L, dq, 2, DT[2], sOb)
        read_v(L, i, 2, after=[bar]); glue(L, st, 48)
        st = len(L)
        if dq is not None: drain_st(L, dq, 3, DT[0], sOb)
        read_v(L, i, 3, after=[bar]); glue(L, st, G['v3'])
        msum(L, cb, i == 0)
        for db in range(8):
            pv_db(L, cb, db, i == 0)
            if db == 3:
                st = len(L); touch(L, 4)
                read_k(L, (i + 2) % 16, 0, after=[bar])
                glue(L, st, 48 + 6 + 24)
        if i == 15:
            epilogue(L, range(0, cfg.epi_e15), sOc, True)
        return schedule(L, lat_lds=cfg.lat_lds, rate_scale=cfg.rate_scale)

    _iteration = iteration
    def stamp(slot_expr):
        return [I("s_memtime s[68:69]")] + [I(t) for t in slot_expr] + [I("s_waitcnt lgkmcnt(0)"), I("s_sub_u32 s68, s68, s64"),
                I(f"v_mov_b32 v{TM[0]}, s68"), I(f"buffer_store_dword v{TM[0]}, off, s[72:75], s70")]
    if cfg.stamps == 2:
        def iteration(i, variant=''):
            return stamp([f"s_lshl_b32 s70, s{sBlk}, 6", f"s_add_u32 s70, s70, s71", f"s_add_u32 s70, s70, {4*i}"]) + _iteration(i, variant)
    segs['it0F'] = iteration(0, 'F') + [I("s_branch L_it1")]
    for i in range(16):
        segs[f'it{i}'] = iteration(i)
    segs['it14'] += [I(f"s_cmp_eq_u32 s{sBlk}, 3"), I("s_cbranch_scc1 L_it15L")]
    adv = [f"s_mov_b32 s{sOb}, s{sOc}", f"s_mov_b32 s{sOc}, s{sQn}", f"s_mov_b32 s{sKVc}, s{sKVn}",
           f"s_add_u32 s{sBlk}, s{sBlk}, 1", f"s_lshl_b32 s{sBit}, s{sBit}, 1",
           f"s_add_u32 s{sKVn}, s{sKVn}, {16 << 17}", f"s_add_u32 s{sQn}, s{sQn}, {16*768*256}",
           f"s_cmp_eq_u32 s{sBlk}, 3",
           f"s_cselect_b32 s{sKVn}, 0x20000000, s{sKVn}", f"s_cselect_b32 s{sQn}, 0x20000000, s{sQn}",
           "s_branch L_it0"]
    segs['it15'] += [I(t) for t in adv]
    segs['it15L'] = iteration(15, 'L')

    path = ['pro', 'it0F'] + [f'it{i}' for i in range(1, 16)] + [f'it{i}' for i in range(16)] + \
           [f'it{i}' for i in range(15)] + ['it15L']
    st = WaitState(); reqs = {}
    for name in path:
        r = compute_waits(segs[name], st)
        reqs[name] = merge_req(reqs.get(name, {}), r)
    for name in reqs: segs[name] = insert_waits(segs[name], reqs[name])
    nn = 0
    for rep in range(2):
        for a, b in zip([None] + path[:-1], path):
            segs[b], k = fix_hazards(segs[b], history=segs[a][-30:] if a else ()); nn += k
    full = sum((segs[n] for n in path), [])
    bad = check_waits(full, WaitState()); assert not bad, bad[:5]
    bad = check_hazards(full); assert not bad, bad[:5]
    cnt = defaultdict(int)
    for i in range(16):
        for c in segs[f'it{i}']: cnt[c.kind] += 1
    print("per-block counts", dict(cnt), "nops inserted", nn, file=sys.stderr)

    out = [HEADER]
    T = lambda seg: [c.text for c in segs[seg] if c.kind != 'touch']
    out += T('pro') + T('it0F')
    out += [".p2align 6", "L_it0:"] + T('it0') + ["L_it1:"]
    for i in range(1, 16): out += [f"; ---- iteration {i}"] + T(f'it{i}')
    out += ["L_it15L:"] + T('it15L')
    fin = ["s_waitcnt vmcnt(0) lgkmcnt(0)"]
    if cfg.stamps:
        fin += ["s_memtime s[68:69]", "s_memrealtime s[70:71]", "s_waitcnt lgkmcnt(0)",
                "s_sub_u32 s68, s68, s64", "s_sub_u32 s70, s70, s66",
                f"s_lshl_b32 s3, s{sWave}, 4", "s_lshl_b32 s71, s2, 8", "s_add_u32 s3, s3, s71",
                "v_mov_b32 v36, s68", "v_mov_b32 v37, s70", "v_mov_b32 v38, s66", f"v_mov_b32 v39, s{sFlag}",
                "buffer_store_dwordx4 v[36:39], off, s[72:75], s3", "s_waitcnt vmcnt(0)"]
    out += fin
    out += ["L_end:", "s_endpgm", "L_main_end:", KD]
    return "\n".join(out) + "\n"

if __name__ == "__main__":
    cfg = Cfg()
    for a in sys.argv[2:]:
        k, v = a.split('='); setattr(cfg, k, eval(v))
    print(build(cfg), file=open(sys.argv[1], 'w'), end='')
```

```python
import sys
HDR = """.section .rodata,"a"
.p2align 6
.amdhsa_kernel standalone__mha_softmax__near_ridge_kernel
  .amdhsa_next_free_vgpr %d
  .amdhsa_next_free_sgpr 102
  .amdhsa_accum_offset %d
  .amdhsa_group_segment_fixed_size 0
  .amdhsa_kernarg_size 48
  .amdhsa_user_sgpr_count 2
  .amdhsa_user_sgpr_kernarg_segment_ptr 1
  .amdhsa_system_sgpr_workgroup_id_x 1
.end_amdhsa_kernel"""
def gen(shape, fillers, iters, waves=4, nacc=8, body_rep=1):
    L = []
    A = L.append
    A(f"; @launch grid=(256,1,1) block=({waves*64},1,1) lds=163840")
    A('.amdgcn_target "amdgcn-amd-amdhsa--gfx950"')
    A(".text\n.globl standalone__mha_softmax__near_ridge_kernel\n.p2align 8\n.type standalone__mha_softmax__near_ridge_kernel,@function")
    A("standalone__mha_softmax__near_ridge_kernel:")
    A("s_cmp_ge_u32 s2, 256\ns_cbranch_scc1 L_end")
    A("s_load_dwordx2 s[4:5], s[0:1], 0\ns_load_dwordx2 s[6:7], s[0:1], 40\ns_waitcnt lgkmcnt(0)")
    A("s_mov_b32 s8, s4\ns_mov_b32 s9, s5\ns_mov_b32 s10, 0x6000000\ns_mov_b32 s11, 0x20000")
    A("s_mov_b32 s12, s6\ns_mov_b32 s13, s7\ns_mov_b32 s14, 0x1000000\ns_mov_b32 s15, 0x20000")
    A("s_lshl_b32 s3, s2, 17")
    A("v_lshlrev_b32 v1, 4, v0\nv_add_u32 v1, s3, v1")
    A("v_and_b32 v8, 63, v0\nv_lshlrev_b32 v8, 4, v8")
    for i in range(16):
        A(f"buffer_load_dwordx4 v[{32+4*i}:{35+4*i}], v1, s[8:11], 0 offen")
        A(f"v_add_u32 v1, 8192, v1")
    for i in range(128):
        A(f"v_accvgpr_write_b32 a{i}, 0")
    for i in range(32):
        A(f"v_mov_b32 v{96+i}, 0")
    A("s_waitcnt vmcnt(0)")
    for i in range(8):
        A(f"ds_write_b128 v8, v[{32+4*i}:{35+4*i}] offset:{1024*i}")
    A("s_waitcnt lgkmcnt(0)")
    A("s_barrier")
    A("s_memtime s[20:21]\ns_memrealtime s[22:23]\ns_waitcnt lgkmcnt(0)")
    A(f"s_mov_b32 s16, {iters}")
    A(".p2align 6\nL_loop:")
    n = 0
    def sub(f, n):
        return (f.replace("%s", f"v{32 + (n*7) % 64}").replace("%t", f"v{32 + (n*7+3) % 64}")
                 .replace("%d", f"v{96 + n % 16}").replace("%a", f"v{112 + n % 2}")
                 .replace("%q", f"v[{116 + 4*(n % 3)}:{119 + 4*(n % 3)}]").replace("%o", str(1024*(n%8))))
    for rep in range(body_rep):
      for j in range(16):
        a = 64 + 4 * (j % 4); b = 80 + 4 * ((j // 4) % 4)
        fl = fillers[j % len(fillers)] if fillers and isinstance(fillers[0], list) else fillers
        if shape == 32:
            acc = 16 * (j % nacc)
            A(f"v_mfma_f32_32x32x16_bf16 a[{acc}:{acc+15}], v[{a}:{a+3}], v[{b}:{b+3}], a[{acc}:{acc+15}]")
            for f in fl: A(sub(f, n)); n += 1
        else:
            for h in range(2):
                acc = 4 * ((2 * j + h) % (4 * nacc))
                b2 = 80 + 4 * ((j // 4 + h) % 4)
                A(f"v_mfma_f32_16x16x32_bf16 a[{acc}:{acc+3}], v[{a}:{a+3}], v[{b2}:{b2+3}], a[{acc}:{acc+3}]")
                k = 1 if len(fl) > 1 else len(fl)
                fs = fl[:k] if h == 0 else fl[k:]
                for f in fs: A(sub(f, n)); n += 1
    A("s_sub_u32 s16, s16, 1\ns_cmp_lg_u32 s16, 0\ns_cbranch_scc1 L_loop")
    A("s_nop 15\ns_nop 15")
    A("s_memtime s[24:25]\ns_memrealtime s[26:27]\ns_waitcnt lgkmcnt(0)")
    A("s_sub_u32 s24, s24, s20\ns_sub_u32 s26, s26, s22")
    A("v_lshrrev_b32 v2, 6, v0\nv_lshlrev_b32 v2, 4, v2\ns_lshl_b32 s3, s2, 8\nv_add_u32 v2, s3, v2")
    A("v_mov_b32 v4, s24\nv_mov_b32 v5, s26\nv_mov_b32 v6, s22\nv_accvgpr_read_b32 v7, a0")
    A("v_and_b32 v3, 63, v0\nv_cmp_eq_u32 vcc, 0, v3\ns_and_saveexec_b64 s[30:31], vcc")
    A("buffer_store_dwordx4 v[4:7], v2, s[12:15], 0 offen")
    A("s_waitcnt vmcnt(0)")
    A("L_end:\ns_endpgm")
    A(HDR % ((512, 256) if waves == 4 else (256, 128)))
    return "\n".join(L) + "\n"

EXP = "v_exp_f32 %d, %s"
ADD = "v_add_f32 %a, %a, %s"
FMA = "v_fma_f32 %d, %s, s3, %t"
CVT = "v_cvt_pk_bf16_f32 %d, %s, %t"
MAX3 = "v_max3_f32 %a, %a, %s, %t"
DSR = "ds_read_b128 %q, v8 offset:%o"
if __name__ == "__main__":
    cfgs = {
        "m32_bare": (32, []),
        "m16_bare": (16, []),
        "m32_f3": (32, [EXP, ADD, CVT]),
        "m16_f3": (16, [EXP, ADD, CVT]),
        "m32_f25": (32, [[EXP, ADD, CVT], [EXP, ADD, DSR]]),
        "m16_f25": (16, [[EXP, ADD, CVT], [EXP, ADD, DSR]]),
        "m32_f4": (32, [EXP, ADD, FMA, CVT]),
        "m16_f4": (16, [EXP, ADD, FMA, CVT]),
        "m32_f5": (32, [EXP, ADD, FMA, CVT, MAX3]),
        "m16_f5": (16, [EXP, ADD, FMA, CVT, MAX3]),
    }
    for k, (sh, f) in cfgs.items():
        open(f"mb/{k}.s", "w").write(gen(sh, f, 192))
        open(f"mb/{k}_w8.s", "w").write(gen(sh, f, 96, waves=8))
```

```python
from gen_mfma import *
import gen_mfma
B3 = [EXP, ADD, CVT]
DMA = "buffer_load_dwordx4 v1, s[8:11], s3 offen lds"
DMA2 = "buffer_load_dwordx4 v1, s[8:11], s3 offen offset:1024 lds"
M0 = "s_mov_b32 m0, 0x8000"
ST = "buffer_store_dwordx4 v[40:43], v1, s[12:15], 0 offen"
TR = "ds_read_b64_tr_b16 v[124:125], v8 offset:%o"
DW = "ds_write_b128 v8, v[40:43] offset:16384"
def every(n, extra): return [B3 + extra] + [B3] * (n - 1)
M1 = "s_add_u32 m0, s3, 0x8000"
SA = "s_add_u32 s40, s3, 64"
N0 = "s_nop 0"
D4 = [DSR] * 4
P2 = [SA, M0, DMA, M0, N0, DMA2]
W = "s_waitcnt lgkmcnt(15)"
cfgs = {
  "y_base":  [B3],
  "z_p2":    every(16, P2),
  "z_p2d4":  every(16, P2 + D4),
  "z_d4p2":  every(16, D4 + P2),
  "z_std4":  every(16, [ST] + D4),
  "z_d4st":  every(16, D4 + [ST]),
  "z_stp2":  every(16, [ST] + P2),
  "z_stp2d4": every(16, [ST] + P2 + D4),
  "z_dwd4":  every(16, [DW] + D4),
  "z_d4dw":  every(16, D4 + [DW]),
  "z_dwst":  every(16, [DW, ST]),
  "z_wd4":   every(16, [W] + D4),
  "z_d4w":   every(16, D4 + [W]),
  "z_p2i":   every(16, [SA, M0, DSR, DMA, M0, DSR, DMA2, DSR, DSR]),
  "z_first": [[DSR, DSR, DSR, DSR, EXP, ADD, CVT]] + [B3] * 15,
}
for k, f in cfgs.items():
    t = gen(16, f, 192)
    t = t.replace("s_barrier\n", "s_barrier\nv_lshlrev_b32 v1, 4, v0\ns_mov_b32 m0, 0x8000\ns_lshl_b32 s3, s2, 13\ns_add_u32 s12, s12, 0x100000\ns_addc_u32 s13, s13, 0\n", 1)
    t = t.replace("s_nop 15\ns_nop 15\n", "s_nop 15\ns_waitcnt vmcnt(0)\ns_sub_u32 s12, s12, 0x100000\ns_subb_u32 s13, s13, 0\n", 1)
    open(f"mb/{k}.s", "w").write(t)
print(" ".join(cfgs))
```

```python
import sys, struct
from fw import *

HEADER = """; Kernarg layout for this problem (48 bytes, ptrs only, base s[0:1]):
; @launch grid=(256,1,1) block=(256,1,1) lds=163840
.amdgcn_target "amdgcn-amd-amdhsa--gfx950"
.text
.globl standalone__mha_softmax__near_ridge_kernel
.p2align 8
.type standalone__mha_softmax__near_ridge_kernel,@function
standalone__mha_softmax__near_ridge_kernel:"""

KD = """.section .rodata,"a"
.p2align 6
.amdhsa_kernel standalone__mha_softmax__near_ridge_kernel
  .amdhsa_next_free_vgpr 512
  .amdhsa_next_free_sgpr 102
  .amdhsa_accum_offset 256
  .amdhsa_group_segment_fixed_size 0
  .amdhsa_kernarg_size 48
  .amdhsa_user_sgpr_count 2
  .amdhsa_user_sgpr_kernarg_segment_ptr 1
  .amdhsa_system_sgpr_workgroup_id_x 1
.end_amdhsa_kernel"""

def rng(f, b, n): return f"{f}[{b}:{b+n-1}]"
def f32(x): return "0x%08x" % struct.unpack("<I", struct.pack("<f", x))[0]
MF = "v_mfma_f32_16x16x32_bf16"

class Cfg:
    NQ = 6
    NKS = 4; NVS = 4
    NQL = 5
    KP = 1088; VP = 1032
    bar_pos = 12
    lat_lds = 8
    stamps = False
    thr = 2.0 ** 40
    rate_scale = 1.0
    ndefer = 2
    qdma_it = (3, 5, 7, 9, 11, 12)
    drain_it = (1, 2, 4, 6, 8)
    nt_q = True
    nt_o = False
    nt_kv = True
    codepf = True
    qswz = True
    npre = 6
    dma_pair = False
    dma_sp = 3
    pos = dict(drd=6, dk=14, dv=36, dq=64, v1=30, v3=56)
    epi_e15 = 1

def build(cfg):
    NQ = cfg.NQ; KP = cfg.KP; VP = cfg.VP
    KS = 8 * KP; VS = 8 * VP
    KB0 = 0; VB0 = cfg.NKS * KS; QB0 = VB0 + cfg.NVS * VS
    QB0 = (QB0 + 15) // 16 * 16
    NQL = cfg.NQL
    assert QB0 + 4 * NQL * 4096 <= 163840, QB0
    vKrd, vV0, voffK, voffV, vQrd, vOst = 1, 2, 6, 7, 8, 9
    vVrd = [2, 3, 4, 5]
    RINV = [10, 11]
    TM = [12, 13]
    NM = [14 + q for q in range(NQ)]
    TP = [20, 24]
    TA = 28
    QA = [TA + s for s in range(4)]
    S = [[32 + (b * NQ + q) * 8 for q in range(NQ)] for b in range(2)]
    NOV = 4
    O = [('v', 128 + 32 * q) for q in range(NOV)]
    FR = [4 * i for i in range(8)]
    Q = [32 + 16 * q for q in range(NQ)]
    ONES = 128
    LS = [132 + 4 * q for q in range(NQ)]
    O += [('a', 156 + 32 * q) for q in range(NQ - NOV)]
    QX = {q: 220 + 16 * (q - NQL) for q in range(NQL, NQ)}
    sQ, sK, sV, sO = 12, 16, 20, 24
    sWave = 30; sC = 31; sKVc = 32; sKVn = 33; sQn = 34; sOc = 35; sOp = 36; sKw = 37; sVw = 38; sQw = 39
    sT = 40; sT2 = 41; sBlk = 42; sFlag = 43; sThr = 44; sOb = 45; sOn = 46; sBit = 47; sKV0 = 52; sO0 = 53; sRt = 54; sRb = 55; sRk = 56
    c_scale = (128 ** -0.5) * 1.4426950408889634

    segs = {}
    NTKV = ' nt' if cfg.nt_kv else ''
    pro = []
    P = lambda t, **k: (pro.append(I(t, **k)), pro[-1])[1]
    P("s_cmp_ge_u32 s2, 256"); P("s_cbranch_scc1 L_end")
    P("s_load_dwordx4 s[4:7], s[0:1], 0"); P("s_load_dwordx4 s[8:11], s[0:1], 16")
    if cfg.stamps:
        P("s_load_dwordx2 s[60:61], s[0:1], 40"); P("s_memtime s[64:65]"); P("s_memrealtime s[66:67]")
    P("v_and_b32 v32, 63, v0")
    P("v_lshrrev_b32 v33, 6, v0")
    P("v_lshrrev_b32 v34, 4, v32")
    P("v_readfirstlane_b32 s30, v33")
    P("v_and_b32 v35, 15, v32")
    if cfg.codepf:
        P("s_getpc_b64 s[48:49]")
        P("L_pc:")
        P("s_bfe_u32 s50, s2, 0x20003"); P("s_mul_i32 s50, s50, 12288")
        P("v_mul_u32_u24 v40, 3072, v33"); P("v_lshl_add_u32 v40, v32, 4, v40"); P("v_add_u32 v40, s50, v40")
        for j in range(3):
            P(f"v_add_u32 v41, {1024*j}, v40"); P("v_min_u32 v41, (L_main_end-L_pc-16), v41")
            P(f"global_load_dwordx4 v[{44+4*j}:{47+4*j}], v41, s[48:49]")
    P("v_xor_b32 v36, v35, v34"); P("v_lshlrev_b32 v36, 4, v36"); P(f"v_lshl_add_u32 v{voffK}, v34, 8, v36")
    P("v_lshlrev_b32 v36, 2, v34"); P("v_xor_b32 v36, v35, v36"); P("v_lshlrev_b32 v36, 4, v36"); P(f"v_lshl_add_u32 v{voffV}, v34, 8, v36")
    P("v_lshrrev_b32 v36, 2, v35")
    P("v_and_b32 v37, 3, v35")
    P("v_xor_b32 v38, v37, v34"); P("v_lshlrev_b32 v38, 4, v38"); P("v_lshl_add_u32 v38, v37, 8, v38")
    P(f"v_mul_u32_u24 v39, {KP}, v36"); P(f"v_add_u32 v{vKrd}, v39, v38")
    P("v_lshl_add_u32 v38, v36, 10, v38")
    P(f"v_mul_u32_u24 v39, {NQL*4096}, v33"); P("v_add_u32 v38, v38, v39"); P(f"v_add_u32 v{vQrd}, {QB0}, v38")
    P(f"v_mul_u32_u24 v38, {VP}, v34"); P("v_lshl_add_u32 v38, v36, 8, v38"); P("v_lshl_add_u32 v38, v37, 4, v38")
    P(f"v_add_u32 v38, {VB0}, v38")
    for e in range(4):
        P(f"v_xor_b32 v39, {e}, v36"); P(f"v_lshl_add_u32 v{vVrd[e]}, v39, 6, v38")
    P("v_lshlrev_b32 v38, 4, v34"); P(f"v_lshl_add_u32 v{vOst}, v35, 8, v38")
    P(f"v_mul_u32_u24 v39, {NQL*4096}, v33"); P("v_lshl_add_u32 v39, v32, 4, v39"); P(f"v_add_u32 v0, {QB0}, v39")
    P("v_mov_b32 v38, 0x3f803f80")
    for r in range(4): P(f"v_accvgpr_write_b32 a{ONES+r}, v38")
    P("s_waitcnt lgkmcnt(0)")
    for base, src, n in ((sQ, 4, 0x6000000), (sK, 6, 0x4000000), (sV, 8, 0x4000000), (sO, 10, 0x6000000)):
        P(f"s_mov_b32 s{base}, s{src}"); P(f"s_mov_b32 s{base+1}, s{src+1}")
        P(f"s_mov_b32 s{base+2}, {n}"); P(f"s_mov_b32 s{base+3}, 0x20000")
    if cfg.stamps:
        for t in ("s_mov_b32 s72, s60", "s_mov_b32 s73, s61", "s_mov_b32 s74, 0x1000000", "s_mov_b32 s75, 0x20000",
                  "s_lshl_b32 s71, s2, 2", f"s_add_u32 s71, s71, s{sWave}", "s_lshl_b32 s71, s71, 9", "s_add_u32 s71, s71, 0x100000"): P(t)
    P(f"s_mov_b32 s{sC}, {f32(c_scale)}"); P(f"s_mov_b32 s{sThr}, {f32(cfg.thr)}")
    P("s_and_b32 s4, s2, 7"); P("s_lshl_b32 s4, s4, 6"); P("s_lshr_b32 s5, s2, 4"); P("s_add_u32 s4, s4, s5")
    P("s_bfe_u32 s5, s2, 0x10003")
    P(f"s_lshl_b32 s6, s{sWave}, 11")
    P(f"s_lshl_b32 s{sKV0}, s4, 17"); P(f"s_add_u32 s{sKVc}, s{sKV0}, s6")
    P(f"s_add_u32 s{sKVn}, s{sKVc}, {16 << 17}")
    P("s_mul_i32 s6, s4, 768"); P("s_mul_i32 s7, s5, 384"); P("s_add_u32 s6, s6, s7")
    P(f"s_mul_i32 s7, s{sWave}, 96"); P("s_add_u32 s6, s6, s7"); P(f"s_lshl_b32 s{sOc}, s6, 8")
    P(f"s_mov_b32 s{sOb}, 0x20000000"); P(f"s_mov_b32 s{sO0}, s{sOc}")
    P(f"s_add_u32 s{sQn}, s{sOc}, {16*768*256}")
    P(f"s_mul_i32 s{sKw}, s{sWave}, {2*KP}")
    P(f"s_mul_i32 s{sVw}, s{sWave}, {2*VP}"); P(f"s_add_u32 s{sVw}, s{sVw}, {VB0}")
    P(f"s_mul_i32 s{sQw}, s{sWave}, {NQL*4096}"); P(f"s_add_u32 s{sQw}, s{sQw}, {QB0}")
    P(f"s_mov_b32 s{sBlk}, 0"); P(f"s_mov_b32 s{sFlag}, 0"); P(f"s_mov_b32 s{sBit}, 1")

    def dma_kv(L, which, tile, nxt, after=(), mg=None):
        srd, sw, voff, base, SZ, PIT, NS = ((sK, sKw, voffK, KB0, KS, KP, cfg.NKS) if which == 'K'
                                            else (sV, sVw, voffV, 0, VS, VP, cfg.NVS))
        gt = tile + (16 if nxt else 0)
        slot = slot_of(which, tile, nxt)
        tag = (which, tile)
        a = list(after)
        L.append(I(f"s_add_u32 m0, s{sw}, {base + slot*SZ}", after=a))
        L.append(I(f"s_add_u32 s{sT}, s{sKVn if nxt else sKVc}, {tile*8192}", after=a))
        L.append(I(f"buffer_load_dwordx4 v{voff}, s[{srd}:{srd+3}], s{sT} offen{NTKV} lds", tag=tag, after=a, maxgap=mg))
        L.append(I(f"s_add_u32 m0, s{sw}, {base + slot*SZ + PIT - 1024}", after=a))
        L.append(I(f"buffer_load_dwordx4 v{voff}, s[{srd}:{srd+3}], s{sT} offen offset:1024{NTKV} lds", tag=tag, after=a, maxgap=mg + 2 if mg else None))
    def slot_of(which, tile, nxt=False):
        return tile % (cfg.NKS if which == 'K' else cfg.NVS)
    def dma_q(L, grp, sbase, after=(), direct=False, **kw):
        a = list(after)
        L.append(I(f"s_add_u32 s{sT2}, s{sbase}, {grp*4096}", after=a, **kw))
        if grp >= NQL:
            dst = Q[grp] if direct else QX[grp]
            for j in range(4):
                L.append(I(f"buffer_load_dwordx4 {rng('a', dst+4*j, 4)}, v{vOst}, s[{sQ}:{sQ+3}], s{sT2} offen offset:{64*j}{' nt' if cfg.nt_q else ''}", after=a, **kw))
                L[-1].lat = 1
            return
        L.append(I(f"s_add_u32 m0, s{sQw}, {grp*4096}", after=a, **kw))
        for j in range(4):
            vo = voffK
            if cfg.qswz and j:
                vo = TM[j % 2]
                L.append(I(f"v_xor_b32 v{vo}, {64*j}, v{voffK}", after=a, **kw))
            L.append(I(f"buffer_load_dwordx4 v{vo}, s[{sQ}:{sQ+3}], s{sT2} offen offset:{1024*j}{' nt' if cfg.nt_q else ''} lds", tag=('Q', grp), after=a, **kw))
    gid = [0]
    def read_k(L, tile, kb, after=(), maxgap=None):
        gid[0] += 1
        for s in range(4):
            L.append(I(f"ds_read_b128 {rng('a', FR[4*kb+s], 4)}, v{vKrd} offset:{KB0 + slot_of('K', tile)*KS + kb*4*KP + 64*s}",
                       after=list(after), grp=gid[0], glue=(s > 0), maxgap=maxgap))
    def read_v(L, tile, e, after=()):
        gid[0] += 1
        for o in range(2):
            for u in range(2):
                L.append(I(f"ds_read_b64_tr_b16 {rng('a', FR[2*e+o] + 2*u, 2)}, v{vVrd[e]} offset:{slot_of('V', tile)*VS + u*4*VP + 8*o}",
                           after=list(after), grp=gid[0], glue=(o + u > 0)))
    def read_q(L, qb, direct=False, mg=None, after=()):
        gid[0] += 1
        if qb >= NQL:
            if not direct:
                for r in range(16): L.append(I(f"v_accvgpr_mov_b32 a{Q[qb]+r}, a{QX[qb]+r}", maxgap=mg))
            return
        if cfg.qswz and qb == 0:
            L.append(I(f"v_mbcnt_lo_u32_b32 v{QA[0]}, -1, 0")); L.append(I(f"v_mbcnt_hi_u32_b32 v{QA[0]}, -1, v{QA[0]}"))
            L.append(I(f"v_bfe_u32 v{QA[0]}, v{QA[0]}, 2, 2")); L.append(I(f"v_lshl_add_u32 v{QA[0]}, v{QA[0]}, 6, v{vQrd}"))
            for s in range(1, 4): L.append(I(f"v_xor_b32 v{QA[s]}, {64*s}, v{QA[0]}"))
        for s in range(4):
            ad = f"v{QA[s]} offset:{qb*4096}" if cfg.qswz else f"v{vQrd} offset:{qb*4096 + 64*s}"
            L.append(I(f"ds_read_b128 {rng('a', Q[qb]+4*s, 4)}, {ad}",
                       grp=gid[0], glue=(s > 0), waits=[('Q', qb)] if s == 0 else None, maxgap=mg, after=list(after)))
    def qk_chain(L, buf, kb, qb):
        d = rng('v', S[buf][qb] + 4 * kb, 4)
        for s in range(4):
            L.append(I(f"{MF} {d}, {rng('a', FR[4*kb+s], 4)}, {rng('a', Q[qb]+4*s, 4)}, {d if s else '0'}"))
    def softmax_quad(L, buf, kb, qb):
        b = S[buf][qb] + 4 * kb; pb = S[buf][qb] + 2 * kb
        for k in range(4): L.append(I(f"v_fma_f32 v{b+k}, v{b+k}, s{sC}, v{NM[qb]}"))
        for k in range(4): L.append(I(f"v_exp_f32 v{b+k}, v{b+k}"))
        L.append(I(f"v_cvt_pk_bf16_f32 v{pb}, v{b}, v{b+1}"))
        L.append(I(f"v_cvt_pk_bf16_f32 v{pb+1}, v{b+2}, v{b+3}"))
    def rowmax(L, buf, qb):
        b = S[buf][qb]; t, u = TM
        L.append(I(f"v_max3_f32 v{t}, v{b}, v{b+1}, v{b+2}"))
        L.append(I(f"v_max_f32 v{t}, v{t}, v{b+3}"))
        L.append(I(f"v_mov_b32 v{u}, v{t}"))
        L.append(I(f"v_permlane32_swap_b32 v{t}, v{u}"))
        L.append(I(f"v_max_f32 v{t}, v{t}, v{u}"))
        L.append(I(f"v_mov_b32 v{u}, v{t}"))
        L.append(I(f"v_permlane16_swap_b32 v{t}, v{u}"))
        L.append(I(f"v_max_f32 v{t}, v{t}, v{u}"))
        L.append(I(f"v_mul_f32 v{NM[qb]}, -v{t}, s{sC}"))
    def msum(L, buf, first):
        for qb in range(NQ):
            d = rng('a', LS[qb], 4)
            L.append(I(f"{MF} {d}, {rng('a', ONES, 4)}, {rng('v', S[buf][qb], 4)}, {'0' if first else d}"))
    def pv_db(L, buf, db, first):
        for qb in range(NQ):
            d = rng(O[qb][0], O[qb][1] + 4 * db, 4)
            L.append(I(f"{MF} {d}, {rng('a', FR[db], 4)}, {rng('v', S[buf][qb], 4)}, {'0' if first else d}"))
    tpi = [0]
    def epi_l(L, sbit_update=True):
        pass
    def epi_unit(L, qb, e, sbase, direct=False):
        f, b = O[qb]; tp = TP[tpi[0] % 2]; tpi[0] += 1
        ri = RINV[qb % 2]
        for o in range(2):
            base = b + 4 * (2 * e + o)
            if f == 'v':
                for r in range(4): L.append(I(f"v_mul_f32 v{base+r}, v{base+r}, v{ri}"))
                src = base
            else:
                for r in range(4): L.append(I(f"v_accvgpr_read_b32 v{TA+r}, a{base+r}"))
                for r in range(4): L.append(I(f"v_mul_f32 v{TA+r}, v{TA+r}, v{ri}"))
                src = TA
            L.append(I(f"v_cvt_pk_bf16_f32 v{tp+2*o}, v{src}, v{src+1}"))
            L.append(I(f"v_cvt_pk_bf16_f32 v{tp+2*o+1}, v{src+2}, v{src+3}"))
        if qb < NQL and not direct:
            L.append(I(f"ds_write_b128 v{vQrd}, {rng('v', tp, 4)} offset:{qb*4096 + 64*e}"))
            W[qb].append(L[-1])
        else:
            L.append(I(f"s_add_u32 s{sOp}, s{sbase}, {qb*4096}"))
            L.append(I(f"buffer_store_dwordx4 {rng('v', tp, 4)}, v{vOst}, s[{sO}:{sO+3}], s{sOp} offen offset:{64*e}{' nt' if cfg.nt_o else ''}", tag=('O',)))
    W = defaultdict(list)
    DT = [TP[0], TP[1], TA]
    def drain(L, qb, sbase, after=()):
        st = []
        L.append(I(f"s_add_u32 s{sOp}, s{sbase}, {qb*4096}"))
        for j in range(4):
            t = DT[tpi[0] % 3]; tpi[0] += 1
            L.append(I(f"ds_read_b128 {rng('v', t, 4)}, v0 offset:{qb*4096 + 1024*j}", after=list(after)))
            L.append(I(f"buffer_store_dwordx4 {rng('v', t, 4)}, v{voffK}, s[{sO}:{sO+3}], s{sOp} offen offset:{1024*j}{' nt' if cfg.nt_o else ''}", tag=('O',)))
            st.append(L[-1])
        return st
    def epi_rinv(L, qb, check):
        ri = RINV[qb % 2]
        L.append(I(f"v_accvgpr_read_b32 v{ri}, a{LS[qb]}"))
        if check:
            L.append(I(f"v_cmp_nge_f32 vcc, s{sThr}, v{ri}"))
            L.append(I(f"s_cmp_lg_u64 vcc, 0"))
            L.append(I(f"s_cselect_b32 s{sOn}, s{sBit}, 0", glue=True))
            L.append(I(f"s_or_b32 s{sFlag}, s{sFlag}, s{sOn}"))
        L.append(I(f"v_rcp_f32 v{ri}, v{ri}"))
    def epilogue(L, es, sbase, check):
        for qb in range(NQ):
            epi_rinv(L, qb, check)
            for e in es: epi_unit(L, qb, e, sbase)

    def glue0(L, start, gap):
        for k, x in enumerate(L[start:]):
            x.glue = k > 0; x.mingap = gap; x.maxgap = gap
    def pstamp(k):
        if cfg.stamps == 2:
            for t in ("s_memtime s[68:69]", f"s_add_u32 s70, s71, {256 + 4*k}", "s_waitcnt lgkmcnt(0)", "s_sub_u32 s68, s68, s64",
                      f"v_mov_b32 v{TM[0]}, s68", f"buffer_store_dword v{TM[0]}, off, s[72:75], s70"): P(t)
    pstamp(0)
    dma_kv(pro, 'K', 0, False)
    npre = cfg.npre
    dma_q(pro, 0, sOc, direct=True)
    dma_kv(pro, 'K', 1, False)
    for g in range(1, npre): dma_q(pro, g, sOc, direct=True)
    pstamp(1)
    P("s_barrier", waits=[('K', 0)])
    pstamp(2)
    p2 = []
    read_k(p2, 0, 0); read_k(p2, 0, 1)
    late = [('V', 0), ('K', 2), ('V', 1), ('K', 3), ('V', 2)]
    for kb in range(2):
        for qb in range(NQ):
            if kb == 0:
                if qb + npre < NQ:
                    st = len(p2); dma_q(p2, qb + npre, sOc, direct=True); glue0(p2, st, max(4 * qb - 1, -1))
                read_q(p2, qb, direct=True, after=[x for x in p2 if x.tag == ('Q', qb)])
            qk_chain(p2, 0, kb, qb)
            if kb == 0: rowmax(p2, 0, qb)
            if kb == 1 and qb < len(late):
                st = len(p2); w, t = late[qb]; dma_kv(p2, w, t, False); glue0(p2, st, 24 + 4 * qb)
            if kb == 0 or qb < NQ - cfg.ndefer: softmax_quad(p2, 0, kb, qb)
    b2 = I("s_barrier", pin=True, waits=[('K', 1)]); p2.append(b2)
    read_k(p2, 1, 0, after=[b2])
    pro += schedule(p2, lat_lds=cfg.lat_lds)
    pstamp(3)
    segs['pro'] = pro

    def glue(L, start, gap=None):
        for k, x in enumerate(L[start:]):
            x.glue = k > 0
            if gap is not None: x.mingap = gap; x.maxgap = gap
    def fill_m0(L, start):
        seg = L[start:]
        k = 0
        while k + 1 < len(seg):
            if 'm0' in seg[k].wr and seg[k+1].kind == 'dma':
                j = next((x for x in range(k + 2, len(seg)) if seg[x].kind == 'ldsr'), None)
                if j is not None:
                    seg.insert(k + 1, seg.pop(j))
            k += 1
        L[start:] = seg
    def touch(L, lo):
        L.append(I(f"touch {rng('a', FR[lo], 16)}"))
    def drain_rd(L, qb, j, t):
        L.append(I(f"ds_read_b128 {rng('v', t, 4)}, v0 offset:{qb*4096 + 1024*j}"))
    def drain_st(L, qb, j, t, sbase):
        L.append(I(f"s_add_u32 s{sOp}, s{sbase}, {qb*4096}"))
        L.append(I(f"buffer_store_dwordx4 {rng('v', t, 4)}, v{voffK}, s[{sO}:{sO+3}], s{sOp} offen offset:{1024*j}{' nt' if cfg.nt_o else ''}", tag=('O',)))
    def iteration(i, variant=''):
        L = []
        nt = (i + 1) % 16; nb = (i + 1) % 2; cb = i % 2
        last = (variant == 'L')
        W.clear()
        dq = [g for g in range(NQL) if cfg.drain_it[g] == i]
        qq = [g for g in range(NQ) if cfg.qdma_it[g] == i]
        dq = dq[0] if dq else None; qq = qq[0] if qq else None
        if last:
            for qb in range(NQ - cfg.ndefer, NQ): softmax_quad(L, cb, 1, qb)
            bar = I("s_barrier", pin=True, waits=[('V', i)]); L.append(bar)
            for e in range(4): read_v(L, i, e, after=[bar])
            msum(L, cb, False)
            for qb in range(NQ):
                for db in range(8):
                    d = rng(O[qb][0], O[qb][1] + 4 * db, 4)
                    L.append(I(f"{MF} {d}, {rng('a', FR[db], 4)}, {rng('v', S[cb][qb], 4)}, {d}"))
                epi_rinv(L, qb, True)
                for e in range(4): epi_unit(L, qb, e, sOc)
                if qb < NQL: drain(L, qb, sOc, after=W[qb])
            return schedule(L, lat_lds=cfg.lat_lds, rate_scale=cfg.rate_scale)
        G = cfg.pos
        st = len(L); touch(L, 0); read_k(L, nt, 1)
        glue(L, st, -1)
        if dq is not None:
            st = len(L)
            for j in range(3): drain_rd(L, dq, j, DT[j])
            glue(L, st, G['drd'])
        for qb in range(NQ - cfg.ndefer, NQ): softmax_quad(L, cb, 1, qb)
        if qq is not None and qq < NQL and cfg.qswz:
            XT = [TM[0], TM[1], TA]
            for j in range(1, 4): L.append(I(f"v_xor_b32 v{XT[j-1]}, {64*j}, v{voffK}"))
        n = 0
        for kb in range(2):
            for qb in range(NQ):
                qk_chain(L, nb, kb, qb); n += 4
                if i == 15 and kb == 0: rowmax(L, nb, qb)
                if kb == 0 or qb < NQ - cfg.ndefer: softmax_quad(L, nb, kb, qb)
                if i == 14 and kb == 1: read_q(L, qb, mg=25 + 4 * qb + 10 + 4 * qb)
                if n == cfg.bar_pos:
                    bar = I("s_barrier", pin=True, waits=[('V', i), ('K', (i + 2) % 16)]); L.append(bar)
                    for which, t, g0 in (('K', i + 4, G['dk']), ('V', i + 3, G['dv'])):
                        st = len(L); dma_kv(L, which, t % 16, t >= 16, after=[bar])
                        if cfg.dma_pair: glue(L, st, g0)
                        else:
                            tail = L[st + 3:]; del L[st + 3:]
                            glue(L, st, g0); st = len(L); L.extend(tail); glue(L, st, g0 + cfg.dma_sp)
                    if qq is not None:
                        st = len(L)
                        ntq = ' nt' if cfg.nt_q else ''
                        if qq < NQL: L.append(I(f"s_add_u32 m0, s{sQw}, {qq*4096}"))
                        L.append(I(f"s_add_u32 s{sT2}, s{sQn}, {qq*4096}"))
                        for j in range(4):
                            if qq < NQL:
                                vo = XT[j-1] if (j and cfg.qswz) else voffK
                                L.append(I(f"buffer_load_dwordx4 v{vo}, s[{sQ}:{sQ+3}], s{sT2} offen offset:{1024*j}{ntq} lds", tag=('Q', qq)))
                            else:
                                L.append(I(f"buffer_load_dwordx4 {rng('a', QX[qq]+4*j, 4)}, v{vOst}, s[{sQ}:{sQ+3}], s{sT2} offen offset:{64*j}{ntq}"))
                        glue(L, st, G['dq'])
            if kb == 0:
                st = len(L); touch(L, 4)
                if dq is not None: drain_st(L, dq, 0, DT[0], sOb)
                read_v(L, i, 0, after=[bar]); glue(L, st, 24)
                st = len(L)
                if dq is not None: drain_st(L, dq, 1, DT[1], sOb)
                read_v(L, i, 1, after=[bar])
                if dq is not None: drain_rd(L, dq, 3, DT[0])
                glue(L, st, G['v1'])
        if i == 0 and variant != 'F':
            epilogue(L, range(cfg.epi_e15, 4), sOb, False)
        st = len(L); touch(L, 0)
        if dq is not None: drain_st(L, dq, 2, DT[2], sOb)
        read_v(L, i, 2, after=[bar]); glue(L, st, 48)
        st = len(L)
        if dq is not None: drain_st(L, dq, 3, DT[0], sOb)
        read_v(L, i, 3, after=[bar]); glue(L, st, G['v3'])
        msum(L, cb, i == 0)
        for db in range(8):
            pv_db(L, cb, db, i == 0)
            if db == 3:
                st = len(L); touch(L, 4)
                read_k(L, (i + 2) % 16, 0, after=[bar])
                glue(L, st, 48 + 6 + 24)
        if i == 15:
            epilogue(L, range(0, cfg.epi_e15), sOc, True)
        return schedule(L, lat_lds=cfg.lat_lds, rate_scale=cfg.rate_scale)

    _iteration = iteration
    def stamp(slot_expr):
        return [I("s_memtime s[68:69]")] + [I(t) for t in slot_expr] + [I("s_waitcnt lgkmcnt(0)"), I("s_sub_u32 s68, s68, s64"),
                I(f"v_mov_b32 v{TM[0]}, s68"), I(f"buffer_store_dword v{TM[0]}, off, s[72:75], s70")]
    if cfg.stamps == 2:
        def iteration(i, variant=''):
            return stamp([f"s_lshl_b32 s70, s{sBlk}, 6", f"s_add_u32 s70, s70, s71", f"s_add_u32 s70, s70, {4*i}"]) + _iteration(i, variant)
    segs['it0F'] = iteration(0, 'F') + [I("s_branch L_it1")]
    for i in range(16):
        segs[f'it{i}'] = iteration(i)
    segs['it14'] += [I(f"s_cmp_eq_u32 s{sBlk}, 3"), I("s_cbranch_scc1 L_it15L")]
    adv = [f"s_mov_b32 s{sOb}, s{sOc}", f"s_mov_b32 s{sOc}, s{sQn}", f"s_mov_b32 s{sKVc}, s{sKVn}",
           f"s_add_u32 s{sBlk}, s{sBlk}, 1", f"s_lshl_b32 s{sBit}, s{sBit}, 1",
           f"s_add_u32 s{sKVn}, s{sKVn}, {16 << 17}", f"s_add_u32 s{sQn}, s{sQn}, {16*768*256}",
           f"s_cmp_eq_u32 s{sBlk}, 3",
           f"s_cselect_b32 s{sKVn}, 0x20000000, s{sKVn}", f"s_cselect_b32 s{sQn}, 0x20000000, s{sQn}",
           "s_branch L_it0"]
    segs['it15'] += [I(t) for t in adv]
    segs['it15L'] = iteration(15, 'L')

    path = ['pro', 'it0F'] + [f'it{i}' for i in range(1, 16)] + [f'it{i}' for i in range(16)] + \
           [f'it{i}' for i in range(15)] + ['it15L']
    st = WaitState(); reqs = {}
    for name in path:
        r = compute_waits(segs[name], st)
        reqs[name] = merge_req(reqs.get(name, {}), r)
    for name in reqs: segs[name] = insert_waits(segs[name], reqs[name])
    nn = 0
    for rep in range(2):
        for a, b in zip([None] + path[:-1], path):
            segs[b], k = fix_hazards(segs[b], history=segs[a][-30:] if a else ()); nn += k
    full = sum((segs[n] for n in path), [])
    bad = check_waits(full, WaitState()); assert not bad, bad[:5]
    bad = check_hazards(full); assert not bad, bad[:5]
    cnt = defaultdict(int)
    for i in range(16):
        for c in segs[f'it{i}']: cnt[c.kind] += 1
    print("per-block counts", dict(cnt), "nops inserted", nn, file=sys.stderr)

    out = [HEADER]
    T = lambda seg: [c.text for c in segs[seg] if c.kind != 'touch']
    out += T('pro') + T('it0F')
    out += [".p2align 6", "L_it0:"] + T('it0') + ["L_it1:"]
    for i in range(1, 16): out += [f"; ---- iteration {i}"] + T(f'it{i}')
    out += ["L_it15L:"] + T('it15L')
    fin = []
    if getattr(cfg, 'diag', None):
        fin += ["s_mov_b32 s50, 48", "L_diag:"]
        for j in range(32):
            if cfg.diag == 'nop': fin += ["s_nop 3"]
            elif cfg.diag == 'm16': fin += [f"{MF} v[{32+4*(j%16)}:{35+4*(j%16)}], a[{4*(j%8)}:{4*(j%8)+3}], a[{32+4*(j%24)}:{35+4*(j%24)}], v[{32+4*(j%16)}:{35+4*(j%16)}]"]
            elif cfg.diag == 'm32' and j % 2 == 0: fin += [f"v_mfma_f32_32x32x16_bf16 v[{32+16*((j//2)%4)}:{47+16*((j//2)%4)}], a[{4*(j%8)}:{4*(j%8)+3}], a[{32+4*(j%24)}:{35+4*(j%24)}], v[{32+16*((j//2)%4)}:{47+16*((j//2)%4)}]"]
        fin += ["s_sub_u32 s50, s50, 1", "s_cmp_lg_u32 s50, 0", "s_cbranch_scc1 L_diag", "s_nop 15"]
    fin += ["s_waitcnt vmcnt(0) lgkmcnt(0)"]
    if cfg.stamps:
        fin += ["s_memtime s[68:69]", "s_memrealtime s[70:71]", "s_waitcnt lgkmcnt(0)",
                "s_sub_u32 s68, s68, s64", "s_sub_u32 s70, s70, s66",
                f"s_lshl_b32 s3, s{sWave}, 4", "s_lshl_b32 s71, s2, 8", "s_add_u32 s3, s3, s71",
                "v_mov_b32 v36, s68", "v_mov_b32 v37, s70", "v_mov_b32 v38, s66", f"v_mov_b32 v39, s{sFlag}",
                "buffer_store_dwordx4 v[36:39], off, s[72:75], s3", "s_waitcnt vmcnt(0)"]
    out += fin
    out += ["s_barrier", f"s_cmp_lg_u32 s{sFlag}, 0", "s_cbranch_scc1 L_redo", "L_end:", "s_endpgm", "L_main_end:"]
    def lin(L):
        st = WaitState()
        L = insert_waits(L, compute_waits(L, st))
        L, _ = fix_hazards(L)
        return [c.text for c in L if c.kind != 'touch'] + ["s_waitcnt vmcnt(0) lgkmcnt(0)", "s_nop 15"]
    RB = 40960
    R = []
    A = lambda t, **k: R.append(I(t, **k))
    A(f"s_mul_i32 s{sRb}, s{sWave}, {RB}")
    A(f"v_add_u32 v{vKrd}, s{sRb}, v{vKrd}")
    A(f"s_add_u32 s{sT}, s{sRb}, {KS - VB0 + (1 << 32) if KS < VB0 else KS - VB0}")
    for e in range(4): A(f"v_add_u32 v{vVrd[e]}, s{sT}, v{vVrd[e]}")
    out += ["s_nop 15", "L_redo:"] + lin(R)
    out += ["L_redo_blk:", f"s_and_b32 s{sT}, s{sFlag}, 1", "s_cbranch_scc0 L_redo_next"]
    def rdma(L, which):
        srd, voff, base, PIT = (sK, voffK, 0, KP) if which == 'K' else (sV, voffV, KS, VP)
        for a in range(8):
            L.append(I(f"s_add_u32 m0, s{sRb}, {base + a*PIT}"))
            L.append(I(f"s_add_u32 s{sT}, s{sRk}, {a*1024}"))
            L.append(I(f"buffer_load_dwordx4 v{voff}, s[{srd}:{srd+3}], s{sT} offen lds", tag='R'))
    def rread_k(L):
        for f in range(8):
            L.append(I(f"ds_read_b128 {rng('a', FR[f], 4)}, v{vKrd} offset:{(f//4)*4*KP + 64*(f%4)}", waits=['R'] if f == 0 else None))
    MX = [S[1][0] + q for q in range(NQ)]
    R = []
    for qb in range(NQ):
        A(f"s_add_u32 s{sT2}, s{sO0}, {qb*4096}")
        for j in range(4): A(f"buffer_load_dwordx4 {rng('a', Q[qb]+4*j, 4)}, v{vOst}, s[{sQ}:{sQ+3}], s{sT2} offen offset:{64*j}")
        A(f"v_mov_b32 v{MX[qb]}, 0xff800000")
        f, b = O[qb]
        for r in range(32): A(f"v_mov_b32 v{b+r}, 0" if f == 'v' else f"v_accvgpr_write_b32 a{b+r}, 0")
        for r in range(4): A(f"v_accvgpr_write_b32 a{LS[qb]+r}, 0")
    A(f"s_mov_b32 s{sRk}, s{sKV0}"); A(f"s_mov_b32 s{sRt}, 16")
    out += lin(R) + ["L_redo_p1:"]
    R = []
    rdma(R, 'K'); rread_k(R)
    for kb in range(2):
        for qb in range(NQ):
            qk_chain(R, 0, kb, qb)
    for qb in range(NQ):
        b = S[0][qb]
        for r in range(0, 8, 2): A(f"v_max3_f32 v{MX[qb]}, v{MX[qb]}, v{b+r}, v{b+r+1}")
    A(f"s_add_u32 s{sRk}, s{sRk}, 8192"); A(f"s_sub_u32 s{sRt}, s{sRt}, 1")
    out += lin(R) + [f"s_cmp_lg_u32 s{sRt}, 0", "s_cbranch_scc1 L_redo_p1"]
    R = []
    for qb in range(NQ):
        t, u = MX[qb], TM[1]
        for sw in ("v_permlane32_swap_b32", "v_permlane16_swap_b32"):
            A(f"v_mov_b32 v{u}, v{t}"); A(f"{sw} v{t}, v{u}"); A(f"v_max_f32 v{t}, v{t}, v{u}")
        A(f"v_mul_f32 v{NM[qb]}, -v{t}, s{sC}")
    A(f"s_mov_b32 s{sRk}, s{sKV0}"); A(f"s_mov_b32 s{sRt}, 16")
    out += lin(R) + ["L_redo_p2:"]
    R = []
    rdma(R, 'K'); rdma(R, 'V'); rread_k(R)
    for kb in range(2):
        for qb in range(NQ):
            qk_chain(R, 0, kb, qb)
    for kb in range(2):
        for qb in range(NQ): softmax_quad(R, 0, kb, qb)
    for db in range(8):
        for u in range(2):
            A(f"ds_read_b64_tr_b16 {rng('a', FR[db] + 2*u, 2)}, v{vVrd[db//2]} offset:{u*4*VP + 8*(db%2)}")
    msum(R, 0, False)
    for db in range(8): pv_db(R, 0, db, False)
    A(f"s_add_u32 s{sRk}, s{sRk}, 8192"); A(f"s_sub_u32 s{sRt}, s{sRt}, 1")
    out += lin(R) + [f"s_cmp_lg_u32 s{sRt}, 0", "s_cbranch_scc1 L_redo_p2"]
    R = []
    for qb in range(NQ):
        epi_rinv(R, qb, False)
        for e in range(4): epi_unit(R, qb, e, sO0, direct=True)
    out += lin(R)
    out += ["L_redo_next:", f"s_add_u32 s{sKV0}, s{sKV0}, {16 << 17}", f"s_add_u32 s{sO0}, s{sO0}, {16*768*256}",
            f"s_lshr_b32 s{sFlag}, s{sFlag}, 1", f"s_cmp_lg_u32 s{sFlag}, 0", "s_cbranch_scc1 L_redo_blk", "s_endpgm", KD]
    return "\n".join(out) + "\n"

if __name__ == "__main__":
    cfg = Cfg()
    for a in sys.argv[2:]:
        k, v = a.split('='); setattr(cfg, k, eval(v))
    print(build(cfg), file=open(sys.argv[1], 'w'), end='')
```

```python
import sys, struct
from fw import *

HEADER = """; Kernarg layout for this problem (48 bytes, ptrs only, base s[0:1]):
; @launch grid=(256,1,1) block=(256,1,1) lds=163840
.amdgcn_target "amdgcn-amd-amdhsa--gfx950"
.text
.globl standalone__mha_softmax__near_ridge_kernel
.p2align 8
.type standalone__mha_softmax__near_ridge_kernel,@function
standalone__mha_softmax__near_ridge_kernel:"""

KD = """.section .rodata,"a"
.p2align 6
.amdhsa_kernel standalone__mha_softmax__near_ridge_kernel
  .amdhsa_next_free_vgpr 512
  .amdhsa_next_free_sgpr 102
  .amdhsa_accum_offset 256
  .amdhsa_group_segment_fixed_size 0
  .amdhsa_kernarg_size 48
  .amdhsa_user_sgpr_count 2
  .amdhsa_user_sgpr_kernarg_segment_ptr 1
  .amdhsa_system_sgpr_workgroup_id_x 1
.end_amdhsa_kernel"""

def rng(f, b, n): return f"{f}[{b}:{b+n-1}]"
def f32(x): return "0x%08x" % struct.unpack("<I", struct.pack("<f", x))[0]
MF = "v_mfma_f32_16x16x32_bf16"

class Cfg:
    NQ = 6
    NKS = 4; NVS = 4
    NQL = 5
    KP = 1088; VP = 1032
    bar_pos = 12
    lat_lds = 8
    stamps = False
    thr = 2.0 ** 40
    rate_scale = 1.0
    ndefer = 2
    qdma_it = (3, 5, 7, 9, 11, 12)
    drain_it = (1, 2, 4, 6, 8)
    nt_q = True
    nt_o = False
    nt_kv = True
    codepf = True
    qswz = True
    npre = 6
    dma_pair = False
    dma_sp = 3
    pos = dict(drd=6, dk=14, dv=36, dq=64, v1=30, v3=56)
    epi_e15 = 1

def build(cfg):
    NQ = cfg.NQ; KP = cfg.KP; VP = cfg.VP
    KS = 8 * KP; VS = 8 * VP
    KB0 = 0; VB0 = cfg.NKS * KS; QB0 = VB0 + cfg.NVS * VS
    QB0 = (QB0 + 15) // 16 * 16
    NQL = cfg.NQL
    assert QB0 + 4 * NQL * 4096 <= 163840, QB0
    vKrd, vV0, voffK, voffV, vQrd, vOst = 1, 2, 6, 7, 8, 9
    vVrd = [2, 3, 4, 5]
    RINV = [10, 11]
    TM = [12, 13]
    NM = [14 + q for q in range(NQ)]
    TP = [20, 24]
    TA = 28
    QA = [TA + s for s in range(4)]
    S = [[32 + (b * NQ + q) * 8 for q in range(NQ)] for b in range(2)]
    NOV = 4
    O = [('v', 128 + 32 * q) for q in range(NOV)]
    FR = [4 * i for i in range(8)]
    Q = [32 + 16 * q for q in range(NQ)]
    ONES = 128
    LS = [132 + 4 * q for q in range(NQ)]
    O += [('a', 156 + 32 * q) for q in range(NQ - NOV)]
    QX = {q: 220 + 16 * (q - NQL) for q in range(NQL, NQ)}
    sQ, sK, sV, sO = 12, 16, 20, 24
    sWave = 30; sC = 31; sKVc = 32; sKVn = 33; sQn = 34; sOc = 35; sOp = 36; sKw = 37; sVw = 38; sQw = 39
    sT = 40; sT2 = 41; sBlk = 42; sFlag = 43; sThr = 44; sOb = 45; sOn = 46; sBit = 47; sKV0 = 52; sO0 = 53; sRt = 54; sRb = 55; sRk = 56
    c_scale = (128 ** -0.5) * 1.4426950408889634

    segs = {}
    NTKV = ' nt' if cfg.nt_kv else ''
    pro = []
    P = lambda t, **k: (pro.append(I(t, **k)), pro[-1])[1]
    P("s_cmp_ge_u32 s2, 256"); P("s_cbranch_scc1 L_end")
    P("s_load_dwordx4 s[4:7], s[0:1], 0"); P("s_load_dwordx4 s[8:11], s[0:1], 16")
    if cfg.stamps:
        P(f"s_load_dwordx2 s[60:61], s[0:1], {32 if cfg.stamps == 3 else 40}"); P("s_memtime s[64:65]"); P("s_memrealtime s[66:67]")
    P("v_and_b32 v32, 63, v0")
    P("v_lshrrev_b32 v33, 6, v0")
    P("v_lshrrev_b32 v34, 4, v32")
    P("v_readfirstlane_b32 s30, v33")
    P("v_and_b32 v35, 15, v32")
    if cfg.codepf:
        P("s_getpc_b64 s[48:49]")
        P("L_pc:")
        P("s_bfe_u32 s50, s2, 0x20003"); P("s_mul_i32 s50, s50, 12288")
        P("v_mul_u32_u24 v40, 3072, v33"); P("v_lshl_add_u32 v40, v32, 4, v40"); P("v_add_u32 v40, s50, v40")
        for j in range(3):
            P(f"v_add_u32 v41, {1024*j}, v40"); P("v_min_u32 v41, (L_main_end-L_pc-16), v41")
            P(f"global_load_dwordx4 v[{44+4*j}:{47+4*j}], v41, s[48:49]")
    P("v_xor_b32 v36, v35, v34"); P("v_lshlrev_b32 v36, 4, v36"); P(f"v_lshl_add_u32 v{voffK}, v34, 8, v36")
    P("v_lshlrev_b32 v36, 2, v34"); P("v_xor_b32 v36, v35, v36"); P("v_lshlrev_b32 v36, 4, v36"); P(f"v_lshl_add_u32 v{voffV}, v34, 8, v36")
    P("v_lshrrev_b32 v36, 2, v35")
    P("v_and_b32 v37, 3, v35")
    P("v_xor_b32 v38, v37, v34"); P("v_lshlrev_b32 v38, 4, v38"); P("v_lshl_add_u32 v38, v37, 8, v38")
    P(f"v_mul_u32_u24 v39, {KP}, v36"); P(f"v_add_u32 v{vKrd}, v39, v38")
    P("v_lshl_add_u32 v38, v36, 10, v38")
    P(f"v_mul_u32_u24 v39, {NQL*4096}, v33"); P("v_add_u32 v38, v38, v39"); P(f"v_add_u32 v{vQrd}, {QB0}, v38")
    P(f"v_mul_u32_u24 v38, {VP}, v34"); P("v_lshl_add_u32 v38, v36, 8, v38"); P("v_lshl_add_u32 v38, v37, 4, v38")
    P(f"v_add_u32 v38, {VB0}, v38")
    for e in range(4):
        P(f"v_xor_b32 v39, {e}, v36"); P(f"v_lshl_add_u32 v{vVrd[e]}, v39, 6, v38")
    P("v_lshlrev_b32 v38, 4, v34"); P(f"v_lshl_add_u32 v{vOst}, v35, 8, v38")
    P(f"v_mul_u32_u24 v39, {NQL*4096}, v33"); P("v_lshl_add_u32 v39, v32, 4, v39"); P(f"v_add_u32 v0, {QB0}, v39")
    P("v_mov_b32 v38, 0x3f803f80")
    for r in range(4): P(f"v_accvgpr_write_b32 a{ONES+r}, v38")
    P("s_waitcnt lgkmcnt(0)")
    for base, src, n in ((sQ, 4, 0x6000000), (sK, 6, 0x4000000), (sV, 8, 0x4000000), (sO, 10, 0x6000000)):
        P(f"s_mov_b32 s{base}, s{src}"); P(f"s_mov_b32 s{base+1}, s{src+1}")
        P(f"s_mov_b32 s{base+2}, {n}"); P(f"s_mov_b32 s{base+3}, 0x20000")
    if cfg.stamps:
        for t in ("s_mov_b32 s72, s60", "s_mov_b32 s73, s61", f"s_mov_b32 s74, {64 if cfg.stamps == 3 else 0x1000000}", "s_mov_b32 s75, 0x20000",
                  "s_lshl_b32 s71, s2, 2", f"s_add_u32 s71, s71, s{sWave}", "s_lshl_b32 s71, s71, 9", "s_add_u32 s71, s71, 0x100000"): P(t)
    P(f"s_mov_b32 s{sC}, {f32(c_scale)}"); P(f"s_mov_b32 s{sThr}, {f32(cfg.thr)}")
    P("s_and_b32 s4, s2, 7"); P("s_lshl_b32 s4, s4, 6"); P("s_lshr_b32 s5, s2, 4"); P("s_add_u32 s4, s4, s5")
    P("s_bfe_u32 s5, s2, 0x10003")
    P(f"s_lshl_b32 s6, s{sWave}, 11")
    P(f"s_lshl_b32 s{sKV0}, s4, 17"); P(f"s_add_u32 s{sKVc}, s{sKV0}, s6")
    P(f"s_add_u32 s{sKVn}, s{sKVc}, {16 << 17}")
    P("s_mul_i32 s6, s4, 768"); P("s_mul_i32 s7, s5, 384"); P("s_add_u32 s6, s6, s7")
    P(f"s_mul_i32 s7, s{sWave}, 96"); P("s_add_u32 s6, s6, s7"); P(f"s_lshl_b32 s{sOc}, s6, 8")
    P(f"s_mov_b32 s{sOb}, 0x20000000"); P(f"s_mov_b32 s{sO0}, s{sOc}")
    P(f"s_add_u32 s{sQn}, s{sOc}, {16*768*256}")
    P(f"s_mul_i32 s{sKw}, s{sWave}, {2*KP}")
    P(f"s_mul_i32 s{sVw}, s{sWave}, {2*VP}"); P(f"s_add_u32 s{sVw}, s{sVw}, {VB0}")
    P(f"s_mul_i32 s{sQw}, s{sWave}, {NQL*4096}"); P(f"s_add_u32 s{sQw}, s{sQw}, {QB0}")
    P(f"s_mov_b32 s{sBlk}, 0"); P(f"s_mov_b32 s{sFlag}, 0"); P(f"s_mov_b32 s{sBit}, 1")

    def dma_kv(L, which, tile, nxt, after=(), mg=None):
        srd, sw, voff, base, SZ, PIT, NS = ((sK, sKw, voffK, KB0, KS, KP, cfg.NKS) if which == 'K'
                                            else (sV, sVw, voffV, 0, VS, VP, cfg.NVS))
        gt = tile + (16 if nxt else 0)
        slot = slot_of(which, tile, nxt)
        tag = (which, tile)
        a = list(after)
        L.append(I(f"s_add_u32 m0, s{sw}, {base + slot*SZ}", after=a))
        L.append(I(f"s_add_u32 s{sT}, s{sKVn if nxt else sKVc}, {tile*8192}", after=a))
        L.append(I(f"buffer_load_dwordx4 v{voff}, s[{srd}:{srd+3}], s{sT} offen{NTKV} lds", tag=tag, after=a, maxgap=mg))
        L.append(I(f"s_add_u32 m0, s{sw}, {base + slot*SZ + PIT - 1024}", after=a))
        L.append(I(f"buffer_load_dwordx4 v{voff}, s[{srd}:{srd+3}], s{sT} offen offset:1024{NTKV} lds", tag=tag, after=a, maxgap=mg + 2 if mg else None))
    def slot_of(which, tile, nxt=False):
        return tile % (cfg.NKS if which == 'K' else cfg.NVS)
    def dma_q(L, grp, sbase, after=(), direct=False, **kw):
        a = list(after)
        L.append(I(f"s_add_u32 s{sT2}, s{sbase}, {grp*4096}", after=a, **kw))
        if grp >= NQL:
            dst = Q[grp] if direct else QX[grp]
            for j in range(4):
                L.append(I(f"buffer_load_dwordx4 {rng('a', dst+4*j, 4)}, v{vOst}, s[{sQ}:{sQ+3}], s{sT2} offen offset:{64*j}{' nt' if cfg.nt_q else ''}", after=a, **kw))
                L[-1].lat = 1
            return
        L.append(I(f"s_add_u32 m0, s{sQw}, {grp*4096}", after=a, **kw))
        for j in range(4):
            vo = voffK
            if cfg.qswz and j:
                vo = TM[j % 2]
                L.append(I(f"v_xor_b32 v{vo}, {64*j}, v{voffK}", after=a, **kw))
            L.append(I(f"buffer_load_dwordx4 v{vo}, s[{sQ}:{sQ+3}], s{sT2} offen offset:{1024*j}{' nt' if cfg.nt_q else ''} lds", tag=('Q', grp), after=a, **kw))
    gid = [0]
    def read_k(L, tile, kb, after=(), maxgap=None):
        gid[0] += 1
        for s in range(4):
            L.append(I(f"ds_read_b128 {rng('a', FR[4*kb+s], 4)}, v{vKrd} offset:{KB0 + slot_of('K', tile)*KS + kb*4*KP + 64*s}",
                       after=list(after), grp=gid[0], glue=(s > 0), maxgap=maxgap))
    def read_v(L, tile, e, after=()):
        gid[0] += 1
        for o in range(2):
            for u in range(2):
                L.append(I(f"ds_read_b64_tr_b16 {rng('a', FR[2*e+o] + 2*u, 2)}, v{vVrd[e]} offset:{slot_of('V', tile)*VS + u*4*VP + 8*o}",
                           after=list(after), grp=gid[0], glue=(o + u > 0)))
    def read_q(L, qb, direct=False, mg=None, after=()):
        gid[0] += 1
        if qb >= NQL:
            if not direct:
                for r in range(16): L.append(I(f"v_accvgpr_mov_b32 a{Q[qb]+r}, a{QX[qb]+r}", maxgap=mg))
            return
        if cfg.qswz and qb == 0:
            L.append(I(f"v_mbcnt_lo_u32_b32 v{QA[0]}, -1, 0")); L.append(I(f"v_mbcnt_hi_u32_b32 v{QA[0]}, -1, v{QA[0]}"))
            L.append(I(f"v_bfe_u32 v{QA[0]}, v{QA[0]}, 2, 2")); L.append(I(f"v_lshl_add_u32 v{QA[0]}, v{QA[0]}, 6, v{vQrd}"))
            for s in range(1, 4): L.append(I(f"v_xor_b32 v{QA[s]}, {64*s}, v{QA[0]}"))
        for s in range(4):
            ad = f"v{QA[s]} offset:{qb*4096}" if cfg.qswz else f"v{vQrd} offset:{qb*4096 + 64*s}"
            L.append(I(f"ds_read_b128 {rng('a', Q[qb]+4*s, 4)}, {ad}",
                       grp=gid[0], glue=(s > 0), waits=[('Q', qb)] if s == 0 else None, maxgap=mg, after=list(after)))
    def qk_chain(L, buf, kb, qb):
        d = rng('v', S[buf][qb] + 4 * kb, 4)
        for s in range(4):
            L.append(I(f"{MF} {d}, {rng('a', FR[4*kb+s], 4)}, {rng('a', Q[qb]+4*s, 4)}, {d if s else '0'}"))
    def softmax_quad(L, buf, kb, qb):
        b = S[buf][qb] + 4 * kb; pb = S[buf][qb] + 2 * kb
        for k in range(4): L.append(I(f"v_fma_f32 v{b+k}, v{b+k}, s{sC}, v{NM[qb]}"))
        for k in range(4): L.append(I(f"v_exp_f32 v{b+k}, v{b+k}"))
        L.append(I(f"v_cvt_pk_bf16_f32 v{pb}, v{b}, v{b+1}"))
        L.append(I(f"v_cvt_pk_bf16_f32 v{pb+1}, v{b+2}, v{b+3}"))
    def rowmax(L, buf, qb):
        b = S[buf][qb]; t, u = TM
        L.append(I(f"v_max3_f32 v{t}, v{b}, v{b+1}, v{b+2}"))
        L.append(I(f"v_max_f32 v{t}, v{t}, v{b+3}"))
        L.append(I(f"v_mov_b32 v{u}, v{t}"))
        L.append(I(f"v_permlane32_swap_b32 v{t}, v{u}"))
        L.append(I(f"v_max_f32 v{t}, v{t}, v{u}"))
        L.append(I(f"v_mov_b32 v{u}, v{t}"))
        L.append(I(f"v_permlane16_swap_b32 v{t}, v{u}"))
        L.append(I(f"v_max_f32 v{t}, v{t}, v{u}"))
        L.append(I(f"v_mul_f32 v{NM[qb]}, -v{t}, s{sC}"))
    def msum(L, buf, first):
        for qb in range(NQ):
            d = rng('a', LS[qb], 4)
            L.append(I(f"{MF} {d}, {rng('a', ONES, 4)}, {rng('v', S[buf][qb], 4)}, {'0' if first else d}"))
    def pv_db(L, buf, db, first):
        for qb in range(NQ):
            d = rng(O[qb][0], O[qb][1] + 4 * db, 4)
            L.append(I(f"{MF} {d}, {rng('a', FR[db], 4)}, {rng('v', S[buf][qb], 4)}, {'0' if first else d}"))
    tpi = [0]
    def epi_l(L, sbit_update=True):
        pass
    def epi_unit(L, qb, e, sbase, direct=False):
        f, b = O[qb]; tp = TP[tpi[0] % 2]; tpi[0] += 1
        ri = RINV[qb % 2]
        for o in range(2):
            base = b + 4 * (2 * e + o)
            if f == 'v':
                for r in range(4): L.append(I(f"v_mul_f32 v{base+r}, v{base+r}, v{ri}"))
                src = base
            else:
                for r in range(4): L.append(I(f"v_accvgpr_read_b32 v{TA+r}, a{base+r}"))
                for r in range(4): L.append(I(f"v_mul_f32 v{TA+r}, v{TA+r}, v{ri}"))
                src = TA
            L.append(I(f"v_cvt_pk_bf16_f32 v{tp+2*o}, v{src}, v{src+1}"))
            L.append(I(f"v_cvt_pk_bf16_f32 v{tp+2*o+1}, v{src+2}, v{src+3}"))
        if qb < NQL and not direct:
            L.append(I(f"ds_write_b128 v{vQrd}, {rng('v', tp, 4)} offset:{qb*4096 + 64*e}"))
            W[qb].append(L[-1])
        else:
            L.append(I(f"s_add_u32 s{sOp}, s{sbase}, {qb*4096}"))
            L.append(I(f"buffer_store_dwordx4 {rng('v', tp, 4)}, v{vOst}, s[{sO}:{sO+3}], s{sOp} offen offset:{64*e}{' nt' if cfg.nt_o else ''}", tag=('O',)))
    W = defaultdict(list)
    DT = [TP[0], TP[1], TA]
    def drain(L, qb, sbase, after=()):
        st = []
        L.append(I(f"s_add_u32 s{sOp}, s{sbase}, {qb*4096}"))
        for j in range(4):
            t = DT[tpi[0] % 3]; tpi[0] += 1
            L.append(I(f"ds_read_b128 {rng('v', t, 4)}, v0 offset:{qb*4096 + 1024*j}", after=list(after)))
            L.append(I(f"buffer_store_dwordx4 {rng('v', t, 4)}, v{voffK}, s[{sO}:{sO+3}], s{sOp} offen offset:{1024*j}{' nt' if cfg.nt_o else ''}", tag=('O',)))
            st.append(L[-1])
        return st
    def epi_rinv(L, qb, check):
        ri = RINV[qb % 2]
        L.append(I(f"v_accvgpr_read_b32 v{ri}, a{LS[qb]}"))
        if check:
            L.append(I(f"v_cmp_nge_f32 vcc, s{sThr}, v{ri}"))
            L.append(I(f"s_cmp_lg_u64 vcc, 0"))
            L.append(I(f"s_cselect_b32 s{sOn}, s{sBit}, 0", glue=True))
            L.append(I(f"s_or_b32 s{sFlag}, s{sFlag}, s{sOn}"))
        L.append(I(f"v_rcp_f32 v{ri}, v{ri}"))
    def epilogue(L, es, sbase, check):
        for qb in range(NQ):
            epi_rinv(L, qb, check)
            for e in es: epi_unit(L, qb, e, sbase)

    def glue0(L, start, gap):
        for k, x in enumerate(L[start:]):
            x.glue = k > 0; x.mingap = gap; x.maxgap = gap
    def pstamp(k):
        if cfg.stamps == 2:
            for t in ("s_memtime s[68:69]", f"s_add_u32 s70, s71, {256 + 4*k}", "s_waitcnt lgkmcnt(0)", "s_sub_u32 s68, s68, s64",
                      f"v_mov_b32 v{TM[0]}, s68", f"buffer_store_dword v{TM[0]}, off, s[72:75], s70"): P(t)
    pstamp(0)
    dma_kv(pro, 'K', 0, False)
    npre = cfg.npre
    dma_q(pro, 0, sOc, direct=True)
    dma_kv(pro, 'K', 1, False)
    for g in range(1, npre): dma_q(pro, g, sOc, direct=True)
    pstamp(1)
    P("s_barrier", waits=[('K', 0)])
    pstamp(2)
    p2 = []
    read_k(p2, 0, 0); read_k(p2, 0, 1)
    late = [('V', 0), ('K', 2), ('V', 1), ('K', 3), ('V', 2)]
    for kb in range(2):
        for qb in range(NQ):
            if kb == 0:
                if qb + npre < NQ:
                    st = len(p2); dma_q(p2, qb + npre, sOc, direct=True); glue0(p2, st, max(4 * qb - 1, -1))
                read_q(p2, qb, direct=True, after=[x for x in p2 if x.tag == ('Q', qb)])
            qk_chain(p2, 0, kb, qb)
            if kb == 0: rowmax(p2, 0, qb)
            if kb == 1 and qb < len(late):
                st = len(p2); w, t = late[qb]; dma_kv(p2, w, t, False); glue0(p2, st, 24 + 4 * qb)
            if kb == 0 or qb < NQ - cfg.ndefer: softmax_quad(p2, 0, kb, qb)
    b2 = I("s_barrier", pin=True, waits=[('K', 1)]); p2.append(b2)
    read_k(p2, 1, 0, after=[b2])
    pro += schedule(p2, lat_lds=cfg.lat_lds)
    if cfg.stamps == 3:
        for t in ("s_memtime s[78:79]", "s_waitcnt lgkmcnt(0)", "s_sub_u32 s78, s78, s64"): P(t)
    pstamp(3)
    segs['pro'] = pro

    def glue(L, start, gap=None):
        for k, x in enumerate(L[start:]):
            x.glue = k > 0
            if gap is not None: x.mingap = gap; x.maxgap = gap
    def fill_m0(L, start):
        seg = L[start:]
        k = 0
        while k + 1 < len(seg):
            if 'm0' in seg[k].wr and seg[k+1].kind == 'dma':
                j = next((x for x in range(k + 2, len(seg)) if seg[x].kind == 'ldsr'), None)
                if j is not None:
                    seg.insert(k + 1, seg.pop(j))
            k += 1
        L[start:] = seg
    def touch(L, lo):
        L.append(I(f"touch {rng('a', FR[lo], 16)}"))
    def drain_rd(L, qb, j, t):
        L.append(I(f"ds_read_b128 {rng('v', t, 4)}, v0 offset:{qb*4096 + 1024*j}"))
    def drain_st(L, qb, j, t, sbase):
        L.append(I(f"s_add_u32 s{sOp}, s{sbase}, {qb*4096}"))
        L.append(I(f"buffer_store_dwordx4 {rng('v', t, 4)}, v{voffK}, s[{sO}:{sO+3}], s{sOp} offen offset:{1024*j}{' nt' if cfg.nt_o else ''}", tag=('O',)))
    def iteration(i, variant=''):
        L = []
        nt = (i + 1) % 16; nb = (i + 1) % 2; cb = i % 2
        last = (variant == 'L')
        W.clear()
        dq = [g for g in range(NQL) if cfg.drain_it[g] == i]
        qq = [g for g in range(NQ) if cfg.qdma_it[g] == i]
        dq = dq[0] if dq else None; qq = qq[0] if qq else None
        if last:
            for qb in range(NQ - cfg.ndefer, NQ): softmax_quad(L, cb, 1, qb)
            bar = I("s_barrier", pin=True, waits=[('V', i)]); L.append(bar)
            for e in range(4): read_v(L, i, e, after=[bar])
            msum(L, cb, False)
            for qb in range(NQ):
                for db in range(8):
                    d = rng(O[qb][0], O[qb][1] + 4 * db, 4)
                    L.append(I(f"{MF} {d}, {rng('a', FR[db], 4)}, {rng('v', S[cb][qb], 4)}, {d}"))
                epi_rinv(L, qb, True)
                for e in range(4): epi_unit(L, qb, e, sOc)
                if qb < NQL: drain(L, qb, sOc, after=W[qb])
            return schedule(L, lat_lds=cfg.lat_lds, rate_scale=cfg.rate_scale)
        G = cfg.pos
        st = len(L); touch(L, 0); read_k(L, nt, 1)
        glue(L, st, -1)
        if dq is not None:
            st = len(L)
            for j in range(3): drain_rd(L, dq, j, DT[j])
            glue(L, st, G['drd'])
        for qb in range(NQ - cfg.ndefer, NQ): softmax_quad(L, cb, 1, qb)
        if qq is not None and qq < NQL and cfg.qswz:
            XT = [TM[0], TM[1], TA]
            for j in range(1, 4): L.append(I(f"v_xor_b32 v{XT[j-1]}, {64*j}, v{voffK}"))
        n = 0
        for kb in range(2):
            for qb in range(NQ):
                qk_chain(L, nb, kb, qb); n += 4
                if i == 15 and kb == 0: rowmax(L, nb, qb)
                if kb == 0 or qb < NQ - cfg.ndefer: softmax_quad(L, nb, kb, qb)
                if i == 14 and kb == 1: read_q(L, qb, mg=25 + 4 * qb + 10 + 4 * qb)
                if n == cfg.bar_pos:
                    bar = I("s_barrier", pin=True, waits=[('V', i), ('K', (i + 2) % 16)]); L.append(bar)
                    for which, t, g0 in (('K', i + 4, G['dk']), ('V', i + 3, G['dv'])):
                        st = len(L); dma_kv(L, which, t % 16, t >= 16, after=[bar])
                        if cfg.dma_pair: glue(L, st, g0)
                        else:
                            tail = L[st + 3:]; del L[st + 3:]
                            glue(L, st, g0); st = len(L); L.extend(tail); glue(L, st, g0 + cfg.dma_sp)
                    if qq is not None:
                        st = len(L)
                        ntq = ' nt' if cfg.nt_q else ''
                        if qq < NQL: L.append(I(f"s_add_u32 m0, s{sQw}, {qq*4096}"))
                        L.append(I(f"s_add_u32 s{sT2}, s{sQn}, {qq*4096}"))
                        for j in range(4):
                            if qq < NQL:
                                vo = XT[j-1] if (j and cfg.qswz) else voffK
                                L.append(I(f"buffer_load_dwordx4 v{vo}, s[{sQ}:{sQ+3}], s{sT2} offen offset:{1024*j}{ntq} lds", tag=('Q', qq)))
                            else:
                                L.append(I(f"buffer_load_dwordx4 {rng('a', QX[qq]+4*j, 4)}, v{vOst}, s[{sQ}:{sQ+3}], s{sT2} offen offset:{64*j}{ntq}"))
                        glue(L, st, G['dq'])
            if kb == 0:
                st = len(L); touch(L, 4)
                if dq is not None: drain_st(L, dq, 0, DT[0], sOb)
                read_v(L, i, 0, after=[bar]); glue(L, st, 24)
                st = len(L)
                if dq is not None: drain_st(L, dq, 1, DT[1], sOb)
                read_v(L, i, 1, after=[bar])
                if dq is not None: drain_rd(L, dq, 3, DT[0])
                glue(L, st, G['v1'])
        if i == 0 and variant != 'F':
            epilogue(L, range(cfg.epi_e15, 4), sOb, False)
        st = len(L); touch(L, 0)
        if dq is not None: drain_st(L, dq, 2, DT[2], sOb)
        read_v(L, i, 2, after=[bar]); glue(L, st, 48)
        st = len(L)
        if dq is not None: drain_st(L, dq, 3, DT[0], sOb)
        read_v(L, i, 3, after=[bar]); glue(L, st, G['v3'])
        msum(L, cb, i == 0)
        for db in range(8):
            pv_db(L, cb, db, i == 0)
            if db == 3:
                st = len(L); touch(L, 4)
                read_k(L, (i + 2) % 16, 0, after=[bar])
                glue(L, st, 48 + 6 + 24)
        if i == 15:
            epilogue(L, range(0, cfg.epi_e15), sOc, True)
        return schedule(L, lat_lds=cfg.lat_lds, rate_scale=cfg.rate_scale)

    _iteration = iteration
    def stamp(slot_expr):
        return [I("s_memtime s[68:69]")] + [I(t) for t in slot_expr] + [I("s_waitcnt lgkmcnt(0)"), I("s_sub_u32 s68, s68, s64"),
                I(f"v_mov_b32 v{TM[0]}, s68"), I(f"buffer_store_dword v{TM[0]}, off, s[72:75], s70")]
    if cfg.stamps == 2:
        def iteration(i, variant=''):
            return stamp([f"s_lshl_b32 s70, s{sBlk}, 6", f"s_add_u32 s70, s70, s71", f"s_add_u32 s70, s70, {4*i}"]) + _iteration(i, variant)
    segs['it0F'] = iteration(0, 'F') + [I("s_branch L_it1")]
    for i in range(16):
        segs[f'it{i}'] = iteration(i)
    segs['it14'] += [I(f"s_cmp_eq_u32 s{sBlk}, 3"), I("s_cbranch_scc1 L_it15L")]
    adv = [f"s_mov_b32 s{sOb}, s{sOc}", f"s_mov_b32 s{sOc}, s{sQn}", f"s_mov_b32 s{sKVc}, s{sKVn}",
           f"s_add_u32 s{sBlk}, s{sBlk}, 1", f"s_lshl_b32 s{sBit}, s{sBit}, 1",
           f"s_add_u32 s{sKVn}, s{sKVn}, {16 << 17}", f"s_add_u32 s{sQn}, s{sQn}, {16*768*256}",
           f"s_cmp_eq_u32 s{sBlk}, 3",
           f"s_cselect_b32 s{sKVn}, 0x20000000, s{sKVn}", f"s_cselect_b32 s{sQn}, 0x20000000, s{sQn}",
           "s_branch L_it0"]
    segs['it15'] += [I(t) for t in adv]
    segs['it15L'] = iteration(15, 'L')

    path = ['pro', 'it0F'] + [f'it{i}' for i in range(1, 16)] + [f'it{i}' for i in range(16)] + \
           [f'it{i}' for i in range(15)] + ['it15L']
    st = WaitState(); reqs = {}
    for name in path:
        r = compute_waits(segs[name], st)
        reqs[name] = merge_req(reqs.get(name, {}), r)
    for name in reqs: segs[name] = insert_waits(segs[name], reqs[name])
    nn = 0
    for rep in range(2):
        for a, b in zip([None] + path[:-1], path):
            segs[b], k = fix_hazards(segs[b], history=segs[a][-30:] if a else ()); nn += k
    full = sum((segs[n] for n in path), [])
    bad = check_waits(full, WaitState()); assert not bad, bad[:5]
    bad = check_hazards(full); assert not bad, bad[:5]
    cnt = defaultdict(int)
    for i in range(16):
        for c in segs[f'it{i}']: cnt[c.kind] += 1
    print("per-block counts", dict(cnt), "nops inserted", nn, file=sys.stderr)

    out = [HEADER]
    T = lambda seg: [c.text for c in segs[seg] if c.kind != 'touch']
    out += T('pro') + T('it0F')
    out += [".p2align 6", "L_it0:"] + T('it0') + ["L_it1:"]
    for i in range(1, 16): out += [f"; ---- iteration {i}"] + T(f'it{i}')
    out += ["L_it15L:"] + T('it15L')
    fin = []
    if getattr(cfg, 'diag', None):
        fin += ["s_mov_b32 s50, 48", "L_diag:"]
        for j in range(32):
            if cfg.diag == 'nop': fin += ["s_nop 3"]
            elif cfg.diag == 'm16': fin += [f"{MF} v[{32+4*(j%16)}:{35+4*(j%16)}], a[{4*(j%8)}:{4*(j%8)+3}], a[{32+4*(j%24)}:{35+4*(j%24)}], v[{32+4*(j%16)}:{35+4*(j%16)}]"]
            elif cfg.diag == 'm32' and j % 2 == 0: fin += [f"v_mfma_f32_32x32x16_bf16 v[{32+16*((j//2)%4)}:{47+16*((j//2)%4)}], a[{4*(j%8)}:{4*(j%8)+3}], a[{32+4*(j%24)}:{35+4*(j%24)}], v[{32+16*((j//2)%4)}:{47+16*((j//2)%4)}]"]
        fin += ["s_sub_u32 s50, s50, 1", "s_cmp_lg_u32 s50, 0", "s_cbranch_scc1 L_diag", "s_nop 15"]
    fin += ["s_waitcnt vmcnt(0) lgkmcnt(0)"]
    if cfg.stamps:
        fin += ["s_memtime s[68:69]", "s_memrealtime s[70:71]", "s_waitcnt lgkmcnt(0)",
                "s_sub_u32 s68, s68, s64", "s_sub_u32 s70, s70, s66",
                f"s_lshl_b32 s3, s{sWave}, 4", "s_lshl_b32 s71, s2, 8", "s_add_u32 s3, s3, s71"] + \
               (["s_mul_i32 s3, s2, 193", "s_lshr_b32 s71, s3, 14", "s_mul_i32 s3, s71, 85", "s_sub_u32 s3, s2, s3", f"s_or_b32 s3, s3, s{sWave}",
                 "s_lshl_b32 s3, s3, 8", "s_lshl_b32 s71, s71, 4", "s_add_u32 s3, s3, s71"] if cfg.stamps == 3 else []) + \
               ["v_mov_b32 v36, s68", "v_mov_b32 v37, s70", "v_mov_b32 v38, s66", f"v_mov_b32 v39, s{78 if cfg.stamps == 3 else sFlag}",
                "buffer_store_dwordx4 v[36:39], off, s[72:75], s3", "s_waitcnt vmcnt(0)"]
    out += fin
    out += ["s_barrier", f"s_cmp_lg_u32 s{sFlag}, 0", "s_cbranch_scc1 L_redo", "L_end:", "s_endpgm", "L_main_end:"]
    def lin(L):
        st = WaitState()
        L = insert_waits(L, compute_waits(L, st))
        L, _ = fix_hazards(L)
        return [c.text for c in L if c.kind != 'touch'] + ["s_waitcnt vmcnt(0) lgkmcnt(0)", "s_nop 15"]
    RB = 40960
    R = []
    A = lambda t, **k: R.append(I(t, **k))
    A(f"s_mul_i32 s{sRb}, s{sWave}, {RB}")
    A(f"v_add_u32 v{vKrd}, s{sRb}, v{vKrd}")
    A(f"s_add_u32 s{sT}, s{sRb}, {KS - VB0 + (1 << 32) if KS < VB0 else KS - VB0}")
    for e in range(4): A(f"v_add_u32 v{vVrd[e]}, s{sT}, v{vVrd[e]}")
    out += ["s_nop 15", "L_redo:"] + lin(R)
    out += ["L_redo_blk:", f"s_and_b32 s{sT}, s{sFlag}, 1", "s_cbranch_scc0 L_redo_next"]
    def rdma(L, which):
        srd, voff, base, PIT = (sK, voffK, 0, KP) if which == 'K' else (sV, voffV, KS, VP)
        for a in range(8):
            L.append(I(f"s_add_u32 m0, s{sRb}, {base + a*PIT}"))
            L.append(I(f"s_add_u32 s{sT}, s{sRk}, {a*1024}"))
            L.append(I(f"buffer_load_dwordx4 v{voff}, s[{srd}:{srd+3}], s{sT} offen lds", tag='R'))
    def rread_k(L):
        for f in range(8):
            L.append(I(f"ds_read_b128 {rng('a', FR[f], 4)}, v{vKrd} offset:{(f//4)*4*KP + 64*(f%4)}", waits=['R'] if f == 0 else None))
    MX = [S[1][0] + q for q in range(NQ)]
    R = []
    for qb in range(NQ):
        A(f"s_add_u32 s{sT2}, s{sO0}, {qb*4096}")
        for j in range(4): A(f"buffer_load_dwordx4 {rng('a', Q[qb]+4*j, 4)}, v{vOst}, s[{sQ}:{sQ+3}], s{sT2} offen offset:{64*j}")
        A(f"v_mov_b32 v{MX[qb]}, 0xff800000")
        f, b = O[qb]
        for r in range(32): A(f"v_mov_b32 v{b+r}, 0" if f == 'v' else f"v_accvgpr_write_b32 a{b+r}, 0")
        for r in range(4): A(f"v_accvgpr_write_b32 a{LS[qb]+r}, 0")
    A(f"s_mov_b32 s{sRk}, s{sKV0}"); A(f"s_mov_b32 s{sRt}, 16")
    out += lin(R) + ["L_redo_p1:"]
    R = []
    rdma(R, 'K'); rread_k(R)
    for kb in range(2):
        for qb in range(NQ):
            qk_chain(R, 0, kb, qb)
    for qb in range(NQ):
        b = S[0][qb]
        for r in range(0, 8, 2): A(f"v_max3_f32 v{MX[qb]}, v{MX[qb]}, v{b+r}, v{b+r+1}")
    A(f"s_add_u32 s{sRk}, s{sRk}, 8192"); A(f"s_sub_u32 s{sRt}, s{sRt}, 1")
    out += lin(R) + [f"s_cmp_lg_u32 s{sRt}, 0", "s_cbranch_scc1 L_redo_p1"]
    R = []
    for qb in range(NQ):
        t, u = MX[qb], TM[1]
        for sw in ("v_permlane32_swap_b32", "v_permlane16_swap_b32"):
            A(f"v_mov_b32 v{u}, v{t}"); A(f"{sw} v{t}, v{u}"); A(f"v_max_f32 v{t}, v{t}, v{u}")
        A(f"v_mul_f32 v{NM[qb]}, -v{t}, s{sC}")
    A(f"s_mov_b32 s{sRk}, s{sKV0}"); A(f"s_mov_b32 s{sRt}, 16")
    out += lin(R) + ["L_redo_p2:"]
    R = []
    rdma(R, 'K'); rdma(R, 'V'); rread_k(R)
    for kb in range(2):
        for qb in range(NQ):
            qk_chain(R, 0, kb, qb)
    for kb in range(2):
        for qb in range(NQ): softmax_quad(R, 0, kb, qb)
    for db in range(8):
        for u in range(2):
            A(f"ds_read_b64_tr_b16 {rng('a', FR[db] + 2*u, 2)}, v{vVrd[db//2]} offset:{u*4*VP + 8*(db%2)}")
    msum(R, 0, False)
    for db in range(8): pv_db(R, 0, db, False)
    A(f"s_add_u32 s{sRk}, s{sRk}, 8192"); A(f"s_sub_u32 s{sRt}, s{sRt}, 1")
    out += lin(R) + [f"s_cmp_lg_u32 s{sRt}, 0", "s_cbranch_scc1 L_redo_p2"]
    R = []
    for qb in range(NQ):
        epi_rinv(R, qb, False)
        for e in range(4): epi_unit(R, qb, e, sO0, direct=True)
    out += lin(R)
    out += ["L_redo_next:", f"s_add_u32 s{sKV0}, s{sKV0}, {16 << 17}", f"s_add_u32 s{sO0}, s{sO0}, {16*768*256}",
            f"s_lshr_b32 s{sFlag}, s{sFlag}, 1", f"s_cmp_lg_u32 s{sFlag}, 0", "s_cbranch_scc1 L_redo_blk", "s_endpgm", KD]
    return "\n".join(out) + "\n"

if __name__ == "__main__":
    cfg = Cfg()
    for a in sys.argv[2:]:
        k, v = a.split('='); setattr(cfg, k, eval(v))
    print(build(cfg), file=open(sys.argv[1], 'w'), end='')
```

```python
import sys, struct
from fw import *

HEADER = """; Kernarg layout for this problem (48 bytes, ptrs only, base s[0:1]):
; @launch grid=(256,1,1) block=(256,1,1) lds=163840
.amdgcn_target "amdgcn-amd-amdhsa--gfx950"
.text
.globl standalone__mha_softmax__near_ridge_kernel
.p2align 8
.type standalone__mha_softmax__near_ridge_kernel,@function
standalone__mha_softmax__near_ridge_kernel:"""

KD = """.section .rodata,"a"
.p2align 6
.amdhsa_kernel standalone__mha_softmax__near_ridge_kernel
  .amdhsa_next_free_vgpr 512
  .amdhsa_next_free_sgpr 102
  .amdhsa_accum_offset 256
  .amdhsa_group_segment_fixed_size 0
  .amdhsa_kernarg_size 48
  .amdhsa_user_sgpr_count 2
  .amdhsa_user_sgpr_kernarg_segment_ptr 1
  .amdhsa_system_sgpr_workgroup_id_x 1
.end_amdhsa_kernel"""

def rng(f, b, n): return f"{f}[{b}:{b+n-1}]"
def f32(x): return "0x%08x" % struct.unpack("<I", struct.pack("<f", x))[0]
MF = "v_mfma_f32_16x16x32_bf16"

class Cfg:
    NQ = 6
    NKS = 4; NVS = 4
    NQL = 5
    KP = 1088; VP = 1032
    bar_pos = 12
    lat_lds = 8
    stamps = False
    thr = 2.0 ** 40
    rate_scale = 1.0
    ndefer = 2
    qdma_it = (3, 5, 7, 9, 11, 12)
    drain_it = (1, 2, 4, 6, 8)
    nt_q = True
    o_pol = ''
    nt_kv = True
    codepf = True
    qswz = True
    npre = 6
    dma_pair = False
    kbs = 2; ksp = 3; vbs = 2; vsp = 3
    dma_sp = 3
    pos = dict(drd=6, dk=14, dv=36, dq=64, v1=30, v3=56)
    epi_e15 = 1

def build(cfg):
    NQ = cfg.NQ; KP = cfg.KP; VP = cfg.VP
    KS = 8 * KP; VS = 8 * VP
    KB0 = 0; VB0 = cfg.NKS * KS; QB0 = VB0 + cfg.NVS * VS
    QB0 = (QB0 + 15) // 16 * 16
    NQL = cfg.NQL
    assert QB0 + 4 * NQL * 4096 <= 163840, QB0
    vKrd, vV0, voffK, voffV, vQrd, vOst = 1, 2, 6, 7, 8, 9
    vVrd = [2, 3, 4, 5]
    RINV = [10, 11]
    TM = [12, 13]
    NM = [14 + q for q in range(NQ)]
    TP = [20, 24]
    TA = 28
    QA = [TA + s for s in range(4)]
    S = [[32 + (b * NQ + q) * 8 for q in range(NQ)] for b in range(2)]
    NOV = 4
    O = [('v', 128 + 32 * q) for q in range(NOV)]
    FR = [4 * i for i in range(8)]
    Q = [32 + 16 * q for q in range(NQ)]
    ONES = 128
    LS = [132 + 4 * q for q in range(NQ)]
    O += [('a', 156 + 32 * q) for q in range(NQ - NOV)]
    QX = {q: 220 + 16 * (q - NQL) for q in range(NQL, NQ)}
    sQ, sK, sV, sO = 12, 16, 20, 24
    sWave = 30; sC = 31; sKVc = 32; sKVn = 33; sQn = 34; sOc = 35; sOp = 36; sKw = 37; sVw = 38; sQw = 39
    sT = 40; sT2 = 41; sBlk = 42; sFlag = 43; sThr = 44; sOb = 45; sOn = 46; sBit = 47; sKV0 = 52; sO0 = 53; sRt = 54; sRb = 55; sRk = 56
    c_scale = (128 ** -0.5) * 1.4426950408889634

    segs = {}
    NTKV = ' nt' if cfg.nt_kv else ''
    pro = []
    P = lambda t, **k: (pro.append(I(t, **k)), pro[-1])[1]
    P("s_cmp_ge_u32 s2, 256"); P("s_cbranch_scc1 L_end")
    P("s_load_dwordx4 s[4:7], s[0:1], 0"); P("s_load_dwordx4 s[8:11], s[0:1], 16")
    if cfg.stamps:
        P(f"s_load_dwordx2 s[60:61], s[0:1], {32 if cfg.stamps == 3 else 40}"); P("s_memtime s[64:65]"); P("s_memrealtime s[66:67]")
    P("v_and_b32 v32, 63, v0")
    P("v_lshrrev_b32 v33, 6, v0")
    P("v_lshrrev_b32 v34, 4, v32")
    P("v_readfirstlane_b32 s30, v33")
    P("v_and_b32 v35, 15, v32")
    if cfg.codepf:
        P("s_getpc_b64 s[48:49]")
        P("L_pc:")
        P("s_bfe_u32 s50, s2, 0x20003"); P("s_mul_i32 s50, s50, 12288")
        P("v_mul_u32_u24 v40, 3072, v33"); P("v_lshl_add_u32 v40, v32, 4, v40"); P("v_add_u32 v40, s50, v40")
        for j in range(3):
            P(f"v_add_u32 v41, {1024*j}, v40"); P("v_min_u32 v41, (L_main_end-L_pc-16), v41")
            P(f"global_load_dwordx4 v[{44+4*j}:{47+4*j}], v41, s[48:49]")
    P("v_xor_b32 v36, v35, v34"); P("v_lshlrev_b32 v36, 4, v36"); P(f"v_lshl_add_u32 v{voffK}, v34, 8, v36")
    P("v_lshlrev_b32 v36, 2, v34"); P("v_xor_b32 v36, v35, v36"); P("v_lshlrev_b32 v36, 4, v36"); P(f"v_lshl_add_u32 v{voffV}, v34, 8, v36")
    P("v_lshrrev_b32 v36, 2, v35")
    P("v_and_b32 v37, 3, v35")
    P("v_xor_b32 v38, v37, v34"); P("v_lshlrev_b32 v38, 4, v38"); P("v_lshl_add_u32 v38, v37, 8, v38")
    P(f"v_mul_u32_u24 v39, {KP}, v36"); P(f"v_add_u32 v{vKrd}, v39, v38")
    P("v_lshl_add_u32 v38, v36, 10, v38")
    P(f"v_mul_u32_u24 v39, {NQL*4096}, v33"); P("v_add_u32 v38, v38, v39"); P(f"v_add_u32 v{vQrd}, {QB0}, v38")
    P(f"v_mul_u32_u24 v38, {VP}, v34"); P("v_lshl_add_u32 v38, v36, 8, v38"); P("v_lshl_add_u32 v38, v37, 4, v38")
    P(f"v_add_u32 v38, {VB0}, v38")
    for e in range(4):
        P(f"v_xor_b32 v39, {e}, v36"); P(f"v_lshl_add_u32 v{vVrd[e]}, v39, 6, v38")
    P("v_lshlrev_b32 v38, 4, v34"); P(f"v_lshl_add_u32 v{vOst}, v35, 8, v38")
    P(f"v_mul_u32_u24 v39, {NQL*4096}, v33"); P("v_lshl_add_u32 v39, v32, 4, v39"); P(f"v_add_u32 v0, {QB0}, v39")
    P("v_mov_b32 v38, 0x3f803f80")
    for r in range(4): P(f"v_accvgpr_write_b32 a{ONES+r}, v38")
    P("s_waitcnt lgkmcnt(0)")
    for base, src, n in ((sQ, 4, 0x6000000), (sK, 6, 0x4000000), (sV, 8, 0x4000000), (sO, 10, 0x6000000)):
        P(f"s_mov_b32 s{base}, s{src}"); P(f"s_mov_b32 s{base+1}, s{src+1}")
        P(f"s_mov_b32 s{base+2}, {n}"); P(f"s_mov_b32 s{base+3}, 0x20000")
    if cfg.stamps:
        for t in ("s_mov_b32 s72, s60", "s_mov_b32 s73, s61", f"s_mov_b32 s74, {64 if cfg.stamps == 3 else 0x1000000}", "s_mov_b32 s75, 0x20000",
                  "s_lshl_b32 s71, s2, 2", f"s_add_u32 s71, s71, s{sWave}", "s_lshl_b32 s71, s71, 9", "s_add_u32 s71, s71, 0x100000"): P(t)
    P(f"s_mov_b32 s{sC}, {f32(c_scale)}"); P(f"s_mov_b32 s{sThr}, {f32(cfg.thr)}")
    P("s_and_b32 s4, s2, 7"); P("s_lshl_b32 s4, s4, 6"); P("s_lshr_b32 s5, s2, 4"); P("s_add_u32 s4, s4, s5")
    P("s_bfe_u32 s5, s2, 0x10003")
    P(f"s_lshl_b32 s6, s{sWave}, 11")
    P(f"s_lshl_b32 s{sKV0}, s4, 17"); P(f"s_add_u32 s{sKVc}, s{sKV0}, s6")
    P(f"s_add_u32 s{sKVn}, s{sKVc}, {16 << 17}")
    P("s_mul_i32 s6, s4, 768"); P("s_mul_i32 s7, s5, 384"); P("s_add_u32 s6, s6, s7")
    P(f"s_mul_i32 s7, s{sWave}, 96"); P("s_add_u32 s6, s6, s7"); P(f"s_lshl_b32 s{sOc}, s6, 8")
    P(f"s_mov_b32 s{sOb}, 0x20000000"); P(f"s_mov_b32 s{sO0}, s{sOc}")
    P(f"s_add_u32 s{sQn}, s{sOc}, {16*768*256}")
    P(f"s_mul_i32 s{sKw}, s{sWave}, {2*KP}")
    P(f"s_mul_i32 s{sVw}, s{sWave}, {2*VP}"); P(f"s_add_u32 s{sVw}, s{sVw}, {VB0}")
    P(f"s_mul_i32 s{sQw}, s{sWave}, {NQL*4096}"); P(f"s_add_u32 s{sQw}, s{sQw}, {QB0}")
    P(f"s_mov_b32 s{sBlk}, 0"); P(f"s_mov_b32 s{sFlag}, 0"); P(f"s_mov_b32 s{sBit}, 1")

    def dma_kv(L, which, tile, nxt, after=(), mg=None):
        srd, sw, voff, base, SZ, PIT, NS = ((sK, sKw, voffK, KB0, KS, KP, cfg.NKS) if which == 'K'
                                            else (sV, sVw, voffV, 0, VS, VP, cfg.NVS))
        gt = tile + (16 if nxt else 0)
        slot = slot_of(which, tile, nxt)
        tag = (which, tile)
        a = list(after)
        L.append(I(f"s_add_u32 m0, s{sw}, {base + slot*SZ}", after=a))
        L.append(I(f"s_add_u32 s{sT}, s{sKVn if nxt else sKVc}, {tile*8192}", after=a))
        L.append(I(f"buffer_load_dwordx4 v{voff}, s[{srd}:{srd+3}], s{sT} offen{NTKV} lds", tag=tag, after=a, maxgap=mg))
        L.append(I(f"s_add_u32 m0, s{sw}, {base + slot*SZ + PIT - 1024}", after=a))
        L.append(I(f"buffer_load_dwordx4 v{voff}, s[{srd}:{srd+3}], s{sT} offen offset:1024{NTKV} lds", tag=tag, after=a, maxgap=mg + 2 if mg else None))
    def slot_of(which, tile, nxt=False):
        return tile % (cfg.NKS if which == 'K' else cfg.NVS)
    def dma_q(L, grp, sbase, after=(), direct=False, **kw):
        a = list(after)
        L.append(I(f"s_add_u32 s{sT2}, s{sbase}, {grp*4096}", after=a, **kw))
        if grp >= NQL:
            dst = Q[grp] if direct else QX[grp]
            for j in range(4):
                L.append(I(f"buffer_load_dwordx4 {rng('a', dst+4*j, 4)}, v{vOst}, s[{sQ}:{sQ+3}], s{sT2} offen offset:{64*j}{' nt' if cfg.nt_q else ''}", after=a, **kw))
                L[-1].lat = 1
            return
        L.append(I(f"s_add_u32 m0, s{sQw}, {grp*4096}", after=a, **kw))
        for j in range(4):
            vo = voffK
            if cfg.qswz and j:
                vo = TM[j % 2]
                L.append(I(f"v_xor_b32 v{vo}, {64*j}, v{voffK}", after=a, **kw))
            L.append(I(f"buffer_load_dwordx4 v{vo}, s[{sQ}:{sQ+3}], s{sT2} offen offset:{1024*j}{' nt' if cfg.nt_q else ''} lds", tag=('Q', grp), after=a, **kw))
    gid = [0]
    def read_k(L, tile, kb, after=(), maxgap=None):
        gid[0] += 1
        for s in range(4):
            L.append(I(f"ds_read_b128 {rng('a', FR[4*kb+s], 4)}, v{vKrd} offset:{KB0 + slot_of('K', tile)*KS + kb*4*KP + 64*s}",
                       after=list(after), grp=gid[0], glue=(s > 0), maxgap=maxgap))
    def read_v(L, tile, e, after=()):
        gid[0] += 1
        for o in range(2):
            for u in range(2):
                L.append(I(f"ds_read_b64_tr_b16 {rng('a', FR[2*e+o] + 2*u, 2)}, v{vVrd[e]} offset:{slot_of('V', tile)*VS + u*4*VP + 8*o}",
                           after=list(after), grp=gid[0], glue=(o + u > 0)))
    def read_q(L, qb, direct=False, mg=None, after=()):
        gid[0] += 1
        if qb >= NQL:
            if not direct:
                for r in range(16): L.append(I(f"v_accvgpr_mov_b32 a{Q[qb]+r}, a{QX[qb]+r}", maxgap=mg))
            return
        if cfg.qswz and qb == 0:
            L.append(I(f"v_mbcnt_lo_u32_b32 v{QA[0]}, -1, 0")); L.append(I(f"v_mbcnt_hi_u32_b32 v{QA[0]}, -1, v{QA[0]}"))
            L.append(I(f"v_bfe_u32 v{QA[0]}, v{QA[0]}, 2, 2")); L.append(I(f"v_lshl_add_u32 v{QA[0]}, v{QA[0]}, 6, v{vQrd}"))
            for s in range(1, 4): L.append(I(f"v_xor_b32 v{QA[s]}, {64*s}, v{QA[0]}"))
        for s in range(4):
            ad = f"v{QA[s]} offset:{qb*4096}" if cfg.qswz else f"v{vQrd} offset:{qb*4096 + 64*s}"
            L.append(I(f"ds_read_b128 {rng('a', Q[qb]+4*s, 4)}, {ad}",
                       grp=gid[0], glue=(s > 0), waits=[('Q', qb)] if s == 0 else None, maxgap=mg, after=list(after)))
    def qk_chain(L, buf, kb, qb):
        d = rng('v', S[buf][qb] + 4 * kb, 4)
        for s in range(4):
            L.append(I(f"{MF} {d}, {rng('a', FR[4*kb+s], 4)}, {rng('a', Q[qb]+4*s, 4)}, {d if s else '0'}"))
    def softmax_quad(L, buf, kb, qb):
        b = S[buf][qb] + 4 * kb; pb = S[buf][qb] + 2 * kb
        for k in range(4): L.append(I(f"v_fma_f32 v{b+k}, v{b+k}, s{sC}, v{NM[qb]}"))
        for k in range(4): L.append(I(f"v_exp_f32 v{b+k}, v{b+k}"))
        L.append(I(f"v_cvt_pk_bf16_f32 v{pb}, v{b}, v{b+1}"))
        L.append(I(f"v_cvt_pk_bf16_f32 v{pb+1}, v{b+2}, v{b+3}"))
    def rowmax(L, buf, qb):
        b = S[buf][qb]; t, u = TM
        L.append(I(f"v_max3_f32 v{t}, v{b}, v{b+1}, v{b+2}"))
        L.append(I(f"v_max_f32 v{t}, v{t}, v{b+3}"))
        L.append(I(f"v_mov_b32 v{u}, v{t}"))
        L.append(I(f"v_permlane32_swap_b32 v{t}, v{u}"))
        L.append(I(f"v_max_f32 v{t}, v{t}, v{u}"))
        L.append(I(f"v_mov_b32 v{u}, v{t}"))
        L.append(I(f"v_permlane16_swap_b32 v{t}, v{u}"))
        L.append(I(f"v_max_f32 v{t}, v{t}, v{u}"))
        L.append(I(f"v_mul_f32 v{NM[qb]}, -v{t}, s{sC}"))
    def msum(L, buf, first):
        for qb in range(NQ):
            d = rng('a', LS[qb], 4)
            L.append(I(f"{MF} {d}, {rng('a', ONES, 4)}, {rng('v', S[buf][qb], 4)}, {'0' if first else d}"))
    def pv_db(L, buf, db, first):
        for qb in range(NQ):
            d = rng(O[qb][0], O[qb][1] + 4 * db, 4)
            L.append(I(f"{MF} {d}, {rng('a', FR[db], 4)}, {rng('v', S[buf][qb], 4)}, {'0' if first else d}"))
    tpi = [0]
    def epi_l(L, sbit_update=True):
        pass
    def epi_unit(L, qb, e, sbase, direct=False):
        f, b = O[qb]; tp = TP[tpi[0] % 2]; tpi[0] += 1
        ri = RINV[qb % 2]
        for o in range(2):
            base = b + 4 * (2 * e + o)
            if f == 'v':
                for r in range(4): L.append(I(f"v_mul_f32 v{base+r}, v{base+r}, v{ri}"))
                src = base
            else:
                for r in range(4): L.append(I(f"v_accvgpr_read_b32 v{TA+r}, a{base+r}"))
                for r in range(4): L.append(I(f"v_mul_f32 v{TA+r}, v{TA+r}, v{ri}"))
                src = TA
            L.append(I(f"v_cvt_pk_bf16_f32 v{tp+2*o}, v{src}, v{src+1}"))
            L.append(I(f"v_cvt_pk_bf16_f32 v{tp+2*o+1}, v{src+2}, v{src+3}"))
        if qb < NQL and not direct:
            L.append(I(f"ds_write_b128 v{vQrd}, {rng('v', tp, 4)} offset:{qb*4096 + 64*e}"))
            W[qb].append(L[-1])
        else:
            L.append(I(f"s_add_u32 s{sOp}, s{sbase}, {qb*4096}"))
            L.append(I(f"buffer_store_dwordx4 {rng('v', tp, 4)}, v{vOst}, s[{sO}:{sO+3}], s{sOp} offen offset:{64*e}{cfg.o_pol}", tag=('O',)))
    W = defaultdict(list)
    DT = [TP[0], TP[1], TA]
    def drain(L, qb, sbase, after=()):
        st = []
        L.append(I(f"s_add_u32 s{sOp}, s{sbase}, {qb*4096}"))
        for j in range(4):
            t = DT[tpi[0] % 3]; tpi[0] += 1
            L.append(I(f"ds_read_b128 {rng('v', t, 4)}, v0 offset:{qb*4096 + 1024*j}", after=list(after)))
            L.append(I(f"buffer_store_dwordx4 {rng('v', t, 4)}, v{voffK}, s[{sO}:{sO+3}], s{sOp} offen offset:{1024*j}{cfg.o_pol}", tag=('O',)))
            st.append(L[-1])
        return st
    def epi_rinv(L, qb, check):
        ri = RINV[qb % 2]
        L.append(I(f"v_accvgpr_read_b32 v{ri}, a{LS[qb]}"))
        if check:
            L.append(I(f"v_cmp_nge_f32 vcc, s{sThr}, v{ri}"))
            L.append(I(f"s_cmp_lg_u64 vcc, 0"))
            L.append(I(f"s_cselect_b32 s{sOn}, s{sBit}, 0", glue=True))
            L.append(I(f"s_or_b32 s{sFlag}, s{sFlag}, s{sOn}"))
        L.append(I(f"v_rcp_f32 v{ri}, v{ri}"))
    def epilogue(L, es, sbase, check):
        for qb in range(NQ):
            epi_rinv(L, qb, check)
            for e in es: epi_unit(L, qb, e, sbase)

    def glue0(L, start, gap):
        for k, x in enumerate(L[start:]):
            x.glue = k > 0; x.mingap = gap; x.maxgap = gap
    def pstamp(k):
        if cfg.stamps == 2:
            for t in ("s_memtime s[68:69]", f"s_add_u32 s70, s71, {256 + 4*k}", "s_waitcnt lgkmcnt(0)", "s_sub_u32 s68, s68, s64",
                      f"v_mov_b32 v{TM[0]}, s68", f"buffer_store_dword v{TM[0]}, off, s[72:75], s70"): P(t)
    pstamp(0)
    dma_kv(pro, 'K', 0, False)
    npre = cfg.npre
    dma_q(pro, 0, sOc, direct=True)
    dma_kv(pro, 'K', 1, False)
    for g in range(1, npre): dma_q(pro, g, sOc, direct=True)
    pstamp(1)
    P("s_barrier", waits=[('K', 0)])
    pstamp(2)
    p2 = []
    read_k(p2, 0, 0); read_k(p2, 0, 1)
    late = [('V', 0), ('K', 2), ('V', 1), ('K', 3), ('V', 2)]
    for kb in range(2):
        for qb in range(NQ):
            if kb == 0:
                if qb + npre < NQ:
                    st = len(p2); dma_q(p2, qb + npre, sOc, direct=True); glue0(p2, st, max(4 * qb - 1, -1))
                read_q(p2, qb, direct=True, after=[x for x in p2 if x.tag == ('Q', qb)])
            qk_chain(p2, 0, kb, qb)
            if kb == 0: rowmax(p2, 0, qb)
            if kb == 1 and qb < len(late):
                st = len(p2); w, t = late[qb]; dma_kv(p2, w, t, False); glue0(p2, st, 24 + 4 * qb)
            if kb == 0 or qb < NQ - cfg.ndefer: softmax_quad(p2, 0, kb, qb)
    b2 = I("s_barrier", pin=True, waits=[('K', 1)]); p2.append(b2)
    read_k(p2, 1, 0, after=[b2])
    pro += schedule(p2, lat_lds=cfg.lat_lds)
    if cfg.stamps == 3:
        for t in ("s_memtime s[78:79]", "s_waitcnt lgkmcnt(0)", "s_sub_u32 s78, s78, s64"): P(t)
    pstamp(3)
    segs['pro'] = pro

    def glue(L, start, gap=None):
        for k, x in enumerate(L[start:]):
            x.glue = k > 0
            if gap is not None: x.mingap = gap; x.maxgap = gap
    def glue_split(L, start, gap, bs, sp):
        seg = L[start:]; del L[start:]
        first = next(k for k, x in enumerate(seg) if x.kind == 'ldsr')
        pre, rd = seg[:first], seg[first:]
        for k in range(0, len(rd), bs):
            st = len(L)
            L.extend((pre if k == 0 else []) + rd[k:k + bs])
            glue(L, st, gap + (k // bs) * sp)
    def fill_m0(L, start):
        seg = L[start:]
        k = 0
        while k + 1 < len(seg):
            if 'm0' in seg[k].wr and seg[k+1].kind == 'dma':
                j = next((x for x in range(k + 2, len(seg)) if seg[x].kind == 'ldsr'), None)
                if j is not None:
                    seg.insert(k + 1, seg.pop(j))
            k += 1
        L[start:] = seg
    def touch(L, lo):
        L.append(I(f"touch {rng('a', FR[lo], 16)}"))
    def drain_rd(L, qb, j, t):
        L.append(I(f"ds_read_b128 {rng('v', t, 4)}, v0 offset:{qb*4096 + 1024*j}"))
    def drain_st(L, qb, j, t, sbase):
        L.append(I(f"s_add_u32 s{sOp}, s{sbase}, {qb*4096}"))
        L.append(I(f"buffer_store_dwordx4 {rng('v', t, 4)}, v{voffK}, s[{sO}:{sO+3}], s{sOp} offen offset:{1024*j}{cfg.o_pol}", tag=('O',)))
    def iteration(i, variant=''):
        L = []
        nt = (i + 1) % 16; nb = (i + 1) % 2; cb = i % 2
        last = (variant == 'L')
        W.clear()
        dq = [g for g in range(NQL) if cfg.drain_it[g] == i]
        qq = [g for g in range(NQ) if cfg.qdma_it[g] == i]
        dq = dq[0] if dq else None; qq = qq[0] if qq else None
        if last:
            for qb in range(NQ - cfg.ndefer, NQ): softmax_quad(L, cb, 1, qb)
            bar = I("s_barrier", pin=True, waits=[('V', i)]); L.append(bar)
            for e in range(4): read_v(L, i, e, after=[bar])
            msum(L, cb, False)
            for qb in range(NQ):
                for db in range(8):
                    d = rng(O[qb][0], O[qb][1] + 4 * db, 4)
                    L.append(I(f"{MF} {d}, {rng('a', FR[db], 4)}, {rng('v', S[cb][qb], 4)}, {d}"))
                epi_rinv(L, qb, True)
                for e in range(4): epi_unit(L, qb, e, sOc)
                if qb < NQL: drain(L, qb, sOc, after=W[qb])
            return schedule(L, lat_lds=cfg.lat_lds, rate_scale=cfg.rate_scale)
        G = cfg.pos
        st = len(L); touch(L, 0); read_k(L, nt, 1)
        glue_split(L, st, -1, cfg.kbs, cfg.ksp)
        if dq is not None:
            st = len(L)
            for j in range(3): drain_rd(L, dq, j, DT[j])
            glue(L, st, G['drd'])
        for qb in range(NQ - cfg.ndefer, NQ): softmax_quad(L, cb, 1, qb)
        if qq is not None and qq < NQL and cfg.qswz:
            XT = [TM[0], TM[1], TA]
            for j in range(1, 4): L.append(I(f"v_xor_b32 v{XT[j-1]}, {64*j}, v{voffK}"))
        n = 0
        for kb in range(2):
            for qb in range(NQ):
                qk_chain(L, nb, kb, qb); n += 4
                if i == 15 and kb == 0: rowmax(L, nb, qb)
                if kb == 0 or qb < NQ - cfg.ndefer: softmax_quad(L, nb, kb, qb)
                if i == 14 and kb == 1: read_q(L, qb, mg=25 + 4 * qb + 10 + 4 * qb)
                if n == cfg.bar_pos:
                    bar = I("s_barrier", pin=True, waits=[('V', i), ('K', (i + 2) % 16)]); L.append(bar)
                    for which, t, g0 in (('K', i + 4, G['dk']), ('V', i + 3, G['dv'])):
                        st = len(L); dma_kv(L, which, t % 16, t >= 16, after=[bar])
                        if cfg.dma_pair: glue(L, st, g0)
                        else:
                            tail = L[st + 3:]; del L[st + 3:]
                            glue(L, st, g0); st = len(L); L.extend(tail); glue(L, st, g0 + cfg.dma_sp)
                    if qq is not None:
                        st = len(L)
                        ntq = ' nt' if cfg.nt_q else ''
                        if qq < NQL: L.append(I(f"s_add_u32 m0, s{sQw}, {qq*4096}"))
                        L.append(I(f"s_add_u32 s{sT2}, s{sQn}, {qq*4096}"))
                        for j in range(4):
                            if qq < NQL:
                                vo = XT[j-1] if (j and cfg.qswz) else voffK
                                L.append(I(f"buffer_load_dwordx4 v{vo}, s[{sQ}:{sQ+3}], s{sT2} offen offset:{1024*j}{ntq} lds", tag=('Q', qq)))
                            else:
                                L.append(I(f"buffer_load_dwordx4 {rng('a', QX[qq]+4*j, 4)}, v{vOst}, s[{sQ}:{sQ+3}], s{sT2} offen offset:{64*j}{ntq}"))
                        glue(L, st, G['dq'])
            if kb == 0:
                st = len(L); touch(L, 4)
                if dq is not None: drain_st(L, dq, 0, DT[0], sOb)
                read_v(L, i, 0, after=[bar]); glue_split(L, st, 24, cfg.vbs, cfg.vsp)
                st = len(L)
                if dq is not None: drain_st(L, dq, 1, DT[1], sOb)
                read_v(L, i, 1, after=[bar])
                if dq is not None: drain_rd(L, dq, 3, DT[0])
                glue_split(L, st, G['v1'], cfg.vbs, cfg.vsp)
        if i == 0 and variant != 'F':
            epilogue(L, range(cfg.epi_e15, 4), sOb, False)
        st = len(L); touch(L, 0)
        if dq is not None: drain_st(L, dq, 2, DT[2], sOb)
        read_v(L, i, 2, after=[bar]); glue_split(L, st, 48, cfg.vbs, cfg.vsp)
        st = len(L)
        if dq is not None: drain_st(L, dq, 3, DT[0], sOb)
        read_v(L, i, 3, after=[bar]); glue_split(L, st, G['v3'], cfg.vbs, cfg.vsp)
        msum(L, cb, i == 0)
        for db in range(8):
            pv_db(L, cb, db, i == 0)
            if db == 3:
                st = len(L); touch(L, 4)
                read_k(L, (i + 2) % 16, 0, after=[bar])
                glue_split(L, st, 48 + 6 + 24, cfg.kbs, cfg.ksp)
        if i == 15:
            epilogue(L, range(0, cfg.epi_e15), sOc, True)
        return schedule(L, lat_lds=cfg.lat_lds, rate_scale=cfg.rate_scale)

    _iteration = iteration
    def stamp(slot_expr):
        return [I("s_memtime s[68:69]")] + [I(t) for t in slot_expr] + [I("s_waitcnt lgkmcnt(0)"), I("s_sub_u32 s68, s68, s64"),
                I(f"v_mov_b32 v{TM[0]}, s68"), I(f"buffer_store_dword v{TM[0]}, off, s[72:75], s70")]
    if cfg.stamps == 2:
        def iteration(i, variant=''):
            return stamp([f"s_lshl_b32 s70, s{sBlk}, 6", f"s_add_u32 s70, s70, s71", f"s_add_u32 s70, s70, {4*i}"]) + _iteration(i, variant)
    segs['it0F'] = iteration(0, 'F') + [I("s_branch L_it1")]
    for i in range(16):
        segs[f'it{i}'] = iteration(i)
    segs['it14'] += [I(f"s_cmp_eq_u32 s{sBlk}, 3"), I("s_cbranch_scc1 L_it15L")]
    adv = [f"s_mov_b32 s{sOb}, s{sOc}", f"s_mov_b32 s{sOc}, s{sQn}", f"s_mov_b32 s{sKVc}, s{sKVn}",
           f"s_add_u32 s{sBlk}, s{sBlk}, 1", f"s_lshl_b32 s{sBit}, s{sBit}, 1",
           f"s_add_u32 s{sKVn}, s{sKVn}, {16 << 17}", f"s_add_u32 s{sQn}, s{sQn}, {16*768*256}",
           f"s_cmp_eq_u32 s{sBlk}, 3",
           f"s_cselect_b32 s{sKVn}, 0x20000000, s{sKVn}", f"s_cselect_b32 s{sQn}, 0x20000000, s{sQn}",
           "s_branch L_it0"]
    segs['it15'] += [I(t) for t in adv]
    segs['it15L'] = iteration(15, 'L')

    path = ['pro', 'it0F'] + [f'it{i}' for i in range(1, 16)] + [f'it{i}' for i in range(16)] + \
           [f'it{i}' for i in range(15)] + ['it15L']
    st = WaitState(); reqs = {}
    for name in path:
        r = compute_waits(segs[name], st)
        reqs[name] = merge_req(reqs.get(name, {}), r)
    for name in reqs: segs[name] = insert_waits(segs[name], reqs[name])
    nn = 0
    for rep in range(2):
        for a, b in zip([None] + path[:-1], path):
            segs[b], k = fix_hazards(segs[b], history=segs[a][-30:] if a else ()); nn += k
    full = sum((segs[n] for n in path), [])
    bad = check_waits(full, WaitState()); assert not bad, bad[:5]
    bad = check_hazards(full); assert not bad, bad[:5]
    cnt = defaultdict(int)
    for i in range(16):
        for c in segs[f'it{i}']: cnt[c.kind] += 1
    print("per-block counts", dict(cnt), "nops inserted", nn, file=sys.stderr)

    out = [HEADER]
    T = lambda seg: [c.text for c in segs[seg] if c.kind != 'touch']
    out += T('pro') + T('it0F')
    out += [".p2align 6", "L_it0:"] + T('it0') + ["L_it1:"]
    for i in range(1, 16): out += [f"; ---- iteration {i}"] + T(f'it{i}')
    out += ["L_it15L:"] + T('it15L')
    fin = []
    if getattr(cfg, 'diag', None):
        fin += ["s_mov_b32 s50, 48", "L_diag:"]
        for j in range(32):
            if cfg.diag == 'nop': fin += ["s_nop 3"]
            elif cfg.diag == 'm16': fin += [f"{MF} v[{32+4*(j%16)}:{35+4*(j%16)}], a[{4*(j%8)}:{4*(j%8)+3}], a[{32+4*(j%24)}:{35+4*(j%24)}], v[{32+4*(j%16)}:{35+4*(j%16)}]"]
            elif cfg.diag == 'm32' and j % 2 == 0: fin += [f"v_mfma_f32_32x32x16_bf16 v[{32+16*((j//2)%4)}:{47+16*((j//2)%4)}], a[{4*(j%8)}:{4*(j%8)+3}], a[{32+4*(j%24)}:{35+4*(j%24)}], v[{32+16*((j//2)%4)}:{47+16*((j//2)%4)}]"]
        fin += ["s_sub_u32 s50, s50, 1", "s_cmp_lg_u32 s50, 0", "s_cbranch_scc1 L_diag", "s_nop 15"]
    fin += ["s_waitcnt vmcnt(0) lgkmcnt(0)"]
    if cfg.stamps:
        fin += ["s_memtime s[68:69]", "s_memrealtime s[70:71]", "s_waitcnt lgkmcnt(0)",
                "s_sub_u32 s68, s68, s64", "s_sub_u32 s70, s70, s66",
                f"s_lshl_b32 s3, s{sWave}, 4", "s_lshl_b32 s71, s2, 8", "s_add_u32 s3, s3, s71"] + \
               (["s_mul_i32 s3, s2, 193", "s_lshr_b32 s71, s3, 14", "s_mul_i32 s3, s71, 85", "s_sub_u32 s3, s2, s3", f"s_or_b32 s3, s3, s{sWave}",
                 "s_lshl_b32 s3, s3, 8", "s_lshl_b32 s71, s71, 4", "s_add_u32 s3, s3, s71"] if cfg.stamps == 3 else []) + \
               ["v_mov_b32 v36, s68", "v_mov_b32 v37, s70", "v_mov_b32 v38, s66", f"v_mov_b32 v39, s{78 if cfg.stamps == 3 else sFlag}",
                "buffer_store_dwordx4 v[36:39], off, s[72:75], s3", "s_waitcnt vmcnt(0)"]
    out += fin
    out += ["s_barrier", f"s_cmp_lg_u32 s{sFlag}, 0", "s_cbranch_scc1 L_redo", "L_end:", "s_endpgm", "L_main_end:"]
    def lin(L):
        st = WaitState()
        L = insert_waits(L, compute_waits(L, st))
        L, _ = fix_hazards(L)
        return [c.text for c in L if c.kind != 'touch'] + ["s_waitcnt vmcnt(0) lgkmcnt(0)", "s_nop 15"]
    RB = 40960
    R = []
    A = lambda t, **k: R.append(I(t, **k))
    A(f"s_mul_i32 s{sRb}, s{sWave}, {RB}")
    A(f"v_add_u32 v{vKrd}, s{sRb}, v{vKrd}")
    A(f"s_add_u32 s{sT}, s{sRb}, {KS - VB0 + (1 << 32) if KS < VB0 else KS - VB0}")
    for e in range(4): A(f"v_add_u32 v{vVrd[e]}, s{sT}, v{vVrd[e]}")
    out += ["s_nop 15", "L_redo:"] + lin(R)
    out += ["L_redo_blk:", f"s_and_b32 s{sT}, s{sFlag}, 1", "s_cbranch_scc0 L_redo_next"]
    def rdma(L, which):
        srd, voff, base, PIT = (sK, voffK, 0, KP) if which == 'K' else (sV, voffV, KS, VP)
        for a in range(8):
            L.append(I(f"s_add_u32 m0, s{sRb}, {base + a*PIT}"))
            L.append(I(f"s_add_u32 s{sT}, s{sRk}, {a*1024}"))
            L.append(I(f"buffer_load_dwordx4 v{voff}, s[{srd}:{srd+3}], s{sT} offen lds", tag='R'))
    def rread_k(L):
        for f in range(8):
            L.append(I(f"ds_read_b128 {rng('a', FR[f], 4)}, v{vKrd} offset:{(f//4)*4*KP + 64*(f%4)}", waits=['R'] if f == 0 else None))
    MX = [S[1][0] + q for q in range(NQ)]
    R = []
    for qb in range(NQ):
        A(f"s_add_u32 s{sT2}, s{sO0}, {qb*4096}")
        for j in range(4): A(f"buffer_load_dwordx4 {rng('a', Q[qb]+4*j, 4)}, v{vOst}, s[{sQ}:{sQ+3}], s{sT2} offen offset:{64*j}")
        A(f"v_mov_b32 v{MX[qb]}, 0xff800000")
        f, b = O[qb]
        for r in range(32): A(f"v_mov_b32 v{b+r}, 0" if f == 'v' else f"v_accvgpr_write_b32 a{b+r}, 0")
        for r in range(4): A(f"v_accvgpr_write_b32 a{LS[qb]+r}, 0")
    A(f"s_mov_b32 s{sRk}, s{sKV0}"); A(f"s_mov_b32 s{sRt}, 16")
    out += lin(R) + ["L_redo_p1:"]
    R = []
    rdma(R, 'K'); rread_k(R)
    for kb in range(2):
        for qb in range(NQ):
            qk_chain(R, 0, kb, qb)
    for qb in range(NQ):
        b = S[0][qb]
        for r in range(0, 8, 2): A(f"v_max3_f32 v{MX[qb]}, v{MX[qb]}, v{b+r}, v{b+r+1}")
    A(f"s_add_u32 s{sRk}, s{sRk}, 8192"); A(f"s_sub_u32 s{sRt}, s{sRt}, 1")
    out += lin(R) + [f"s_cmp_lg_u32 s{sRt}, 0", "s_cbranch_scc1 L_redo_p1"]
    R = []
    for qb in range(NQ):
        t, u = MX[qb], TM[1]
        for sw in ("v_permlane32_swap_b32", "v_permlane16_swap_b32"):
            A(f"v_mov_b32 v{u}, v{t}"); A(f"{sw} v{t}, v{u}"); A(f"v_max_f32 v{t}, v{t}, v{u}")
        A(f"v_mul_f32 v{NM[qb]}, -v{t}, s{sC}")
    A(f"s_mov_b32 s{sRk}, s{sKV0}"); A(f"s_mov_b32 s{sRt}, 16")
    out += lin(R) + ["L_redo_p2:"]
    R = []
    rdma(R, 'K'); rdma(R, 'V'); rread_k(R)
    for kb in range(2):
        for qb in range(NQ):
            qk_chain(R, 0, kb, qb)
    for kb in range(2):
        for qb in range(NQ): softmax_quad(R, 0, kb, qb)
    for db in range(8):
        for u in range(2):
            A(f"ds_read_b64_tr_b16 {rng('a', FR[db] + 2*u, 2)}, v{vVrd[db//2]} offset:{u*4*VP + 8*(db%2)}")
    msum(R, 0, False)
    for db in range(8): pv_db(R, 0, db, False)
    A(f"s_add_u32 s{sRk}, s{sRk}, 8192"); A(f"s_sub_u32 s{sRt}, s{sRt}, 1")
    out += lin(R) + [f"s_cmp_lg_u32 s{sRt}, 0", "s_cbranch_scc1 L_redo_p2"]
    R = []
    for qb in range(NQ):
        epi_rinv(R, qb, False)
        for e in range(4): epi_unit(R, qb, e, sO0, direct=True)
    out += lin(R)
    out += ["L_redo_next:", f"s_add_u32 s{sKV0}, s{sKV0}, {16 << 17}", f"s_add_u32 s{sO0}, s{sO0}, {16*768*256}",
            f"s_lshr_b32 s{sFlag}, s{sFlag}, 1", f"s_cmp_lg_u32 s{sFlag}, 0", "s_cbranch_scc1 L_redo_blk", "s_endpgm", KD]
    return "\n".join(out) + "\n"

if __name__ == "__main__":
    cfg = Cfg()
    for a in sys.argv[2:]:
        k, v = a.split('='); setattr(cfg, k, eval(v))
    print(build(cfg), file=open(sys.argv[1], 'w'), end='')
```

```python
import sys, struct
from fw import *

HEADER = """; Kernarg layout for this problem (48 bytes, ptrs only, base s[0:1]):
; @launch grid=(256,1,1) block=(256,1,1) lds=163840
.amdgcn_target "amdgcn-amd-amdhsa--gfx950"
.text
.globl standalone__mha_softmax__near_ridge_kernel
.p2align 8
.type standalone__mha_softmax__near_ridge_kernel,@function
standalone__mha_softmax__near_ridge_kernel:"""

KD = """.section .rodata,"a"
.p2align 6
.amdhsa_kernel standalone__mha_softmax__near_ridge_kernel
  .amdhsa_next_free_vgpr 512
  .amdhsa_next_free_sgpr 102
  .amdhsa_accum_offset 256
  .amdhsa_group_segment_fixed_size 0
  .amdhsa_kernarg_size 48
  .amdhsa_user_sgpr_count 2
  .amdhsa_user_sgpr_kernarg_segment_ptr 1
  .amdhsa_system_sgpr_workgroup_id_x 1
.end_amdhsa_kernel"""

def rng(f, b, n): return f"{f}[{b}:{b+n-1}]"
def f32(x): return "0x%08x" % struct.unpack("<I", struct.pack("<f", x))[0]
MF = "v_mfma_f32_16x16x32_bf16"

class Cfg:
    NQ = 6
    NKS = 4; NVS = 4
    NQL = 5
    KP = 1088; VP = 1032
    bar_pos = 12
    lat_lds = 8
    stamps = False
    thr = 2.0 ** 40
    rate_scale = 1.0
    ndefer = 2
    qdma_it = (3, 5, 7, 9, 11, 12)
    drain_it = (1, 2, 4, 6, 8)
    nt_q = True
    o_pol = ''
    nt_kv = True
    codepf = True
    qswz = True
    npre = 6
    dma_pair = False
    last_order = (5, 4, 0, 1, 2, 3)
    kbs = 2; ksp = 3; vbs = 2; vsp = 3
    dma_sp = 3
    pos = dict(drd=6, dk=14, dv=36, dq=64, v1=30, v3=56)
    epi_e15 = 1

def build(cfg):
    NQ = cfg.NQ; KP = cfg.KP; VP = cfg.VP
    KS = 8 * KP; VS = 8 * VP
    KB0 = 0; VB0 = cfg.NKS * KS; QB0 = VB0 + cfg.NVS * VS
    QB0 = (QB0 + 15) // 16 * 16
    NQL = cfg.NQL
    assert QB0 + 4 * NQL * 4096 <= 163840, QB0
    vKrd, vV0, voffK, voffV, vQrd, vOst = 1, 2, 6, 7, 8, 9
    vVrd = [2, 3, 4, 5]
    RINV = [10, 11]
    TM = [12, 13]
    NM = [14 + q for q in range(NQ)]
    TP = [20, 24]
    TA = 28
    QA = [TA + s for s in range(4)]
    S = [[32 + (b * NQ + q) * 8 for q in range(NQ)] for b in range(2)]
    NOV = 4
    O = [('v', 128 + 32 * q) for q in range(NOV)]
    FR = [4 * i for i in range(8)]
    Q = [32 + 16 * q for q in range(NQ)]
    ONES = 128
    LS = [132 + 4 * q for q in range(NQ)]
    O += [('a', 156 + 32 * q) for q in range(NQ - NOV)]
    QX = {q: 220 + 16 * (q - NQL) for q in range(NQL, NQ)}
    sQ, sK, sV, sO = 12, 16, 20, 24
    sWave = 30; sC = 31; sKVc = 32; sKVn = 33; sQn = 34; sOc = 35; sOp = 36; sKw = 37; sVw = 38; sQw = 39
    sT = 40; sT2 = 41; sBlk = 42; sFlag = 43; sThr = 44; sOb = 45; sOn = 46; sBit = 47; sKV0 = 52; sO0 = 53; sRt = 54; sRb = 55; sRk = 56
    c_scale = (128 ** -0.5) * 1.4426950408889634

    segs = {}
    NTKV = ' nt' if cfg.nt_kv else ''
    pro = []
    P = lambda t, **k: (pro.append(I(t, **k)), pro[-1])[1]
    P("s_cmp_ge_u32 s2, 256"); P("s_cbranch_scc1 L_end")
    P("s_load_dwordx4 s[4:7], s[0:1], 0"); P("s_load_dwordx4 s[8:11], s[0:1], 16")
    if cfg.stamps:
        P(f"s_load_dwordx2 s[60:61], s[0:1], {32 if cfg.stamps == 3 else 40}"); P("s_memtime s[64:65]"); P("s_memrealtime s[66:67]")
    P("v_and_b32 v32, 63, v0")
    P("v_lshrrev_b32 v33, 6, v0")
    P("v_lshrrev_b32 v34, 4, v32")
    P("v_readfirstlane_b32 s30, v33")
    P("v_and_b32 v35, 15, v32")
    if cfg.codepf:
        P("s_getpc_b64 s[48:49]")
        P("L_pc:")
        P("s_bfe_u32 s50, s2, 0x20003"); P("s_mul_i32 s50, s50, 12288")
        P("v_mul_u32_u24 v40, 3072, v33"); P("v_lshl_add_u32 v40, v32, 4, v40"); P("v_add_u32 v40, s50, v40")
        for j in range(3):
            P(f"v_add_u32 v41, {1024*j}, v40"); P("v_min_u32 v41, (L_main_end-L_pc-16), v41")
            P(f"global_load_dwordx4 v[{44+4*j}:{47+4*j}], v41, s[48:49]")
    P("v_xor_b32 v36, v35, v34"); P("v_lshlrev_b32 v36, 4, v36"); P(f"v_lshl_add_u32 v{voffK}, v34, 8, v36")
    P("v_lshlrev_b32 v36, 2, v34"); P("v_xor_b32 v36, v35, v36"); P("v_lshlrev_b32 v36, 4, v36"); P(f"v_lshl_add_u32 v{voffV}, v34, 8, v36")
    P("v_lshrrev_b32 v36, 2, v35")
    P("v_and_b32 v37, 3, v35")
    P("v_xor_b32 v38, v37, v34"); P("v_lshlrev_b32 v38, 4, v38"); P("v_lshl_add_u32 v38, v37, 8, v38")
    P(f"v_mul_u32_u24 v39, {KP}, v36"); P(f"v_add_u32 v{vKrd}, v39, v38")
    P("v_lshl_add_u32 v38, v36, 10, v38")
    P(f"v_mul_u32_u24 v39, {NQL*4096}, v33"); P("v_add_u32 v38, v38, v39"); P(f"v_add_u32 v{vQrd}, {QB0}, v38")
    P(f"v_mul_u32_u24 v38, {VP}, v34"); P("v_lshl_add_u32 v38, v36, 8, v38"); P("v_lshl_add_u32 v38, v37, 4, v38")
    P(f"v_add_u32 v38, {VB0}, v38")
    for e in range(4):
        P(f"v_xor_b32 v39, {e}, v36"); P(f"v_lshl_add_u32 v{vVrd[e]}, v39, 6, v38")
    P("v_lshlrev_b32 v38, 4, v34"); P(f"v_lshl_add_u32 v{vOst}, v35, 8, v38")
    P(f"v_mul_u32_u24 v39, {NQL*4096}, v33"); P("v_lshl_add_u32 v39, v32, 4, v39"); P(f"v_add_u32 v0, {QB0}, v39")
    P("v_mov_b32 v38, 0x3f803f80")
    for r in range(4): P(f"v_accvgpr_write_b32 a{ONES+r}, v38")
    P("s_waitcnt lgkmcnt(0)")
    for base, src, n in ((sQ, 4, 0x6000000), (sK, 6, 0x4000000), (sV, 8, 0x4000000), (sO, 10, 0x6000000)):
        P(f"s_mov_b32 s{base}, s{src}"); P(f"s_mov_b32 s{base+1}, s{src+1}")
        P(f"s_mov_b32 s{base+2}, {n}"); P(f"s_mov_b32 s{base+3}, 0x20000")
    if cfg.stamps:
        for t in ("s_mov_b32 s72, s60", "s_mov_b32 s73, s61", f"s_mov_b32 s74, {64 if cfg.stamps == 3 else 0x1000000}", "s_mov_b32 s75, 0x20000",
                  "s_lshl_b32 s71, s2, 2", f"s_add_u32 s71, s71, s{sWave}", "s_lshl_b32 s71, s71, 9", "s_add_u32 s71, s71, 0x100000"): P(t)
    P(f"s_mov_b32 s{sC}, {f32(c_scale)}"); P(f"s_mov_b32 s{sThr}, {f32(cfg.thr)}")
    P("s_and_b32 s4, s2, 7"); P("s_lshl_b32 s4, s4, 6"); P("s_lshr_b32 s5, s2, 4"); P("s_add_u32 s4, s4, s5")
    P("s_bfe_u32 s5, s2, 0x10003")
    P(f"s_lshl_b32 s6, s{sWave}, 11")
    P(f"s_lshl_b32 s{sKV0}, s4, 17"); P(f"s_add_u32 s{sKVc}, s{sKV0}, s6")
    P(f"s_add_u32 s{sKVn}, s{sKVc}, {16 << 17}")
    P("s_mul_i32 s6, s4, 768"); P("s_mul_i32 s7, s5, 384"); P("s_add_u32 s6, s6, s7")
    P(f"s_mul_i32 s7, s{sWave}, 96"); P("s_add_u32 s6, s6, s7"); P(f"s_lshl_b32 s{sOc}, s6, 8")
    P(f"s_mov_b32 s{sOb}, 0x20000000"); P(f"s_mov_b32 s{sO0}, s{sOc}")
    P(f"s_add_u32 s{sQn}, s{sOc}, {16*768*256}")
    P(f"s_mul_i32 s{sKw}, s{sWave}, {2*KP}")
    P(f"s_mul_i32 s{sVw}, s{sWave}, {2*VP}"); P(f"s_add_u32 s{sVw}, s{sVw}, {VB0}")
    P(f"s_mul_i32 s{sQw}, s{sWave}, {NQL*4096}"); P(f"s_add_u32 s{sQw}, s{sQw}, {QB0}")
    P(f"s_mov_b32 s{sBlk}, 0"); P(f"s_mov_b32 s{sFlag}, 0"); P(f"s_mov_b32 s{sBit}, 1")

    def dma_kv(L, which, tile, nxt, after=(), mg=None):
        srd, sw, voff, base, SZ, PIT, NS = ((sK, sKw, voffK, KB0, KS, KP, cfg.NKS) if which == 'K'
                                            else (sV, sVw, voffV, 0, VS, VP, cfg.NVS))
        gt = tile + (16 if nxt else 0)
        slot = slot_of(which, tile, nxt)
        tag = (which, tile)
        a = list(after)
        L.append(I(f"s_add_u32 m0, s{sw}, {base + slot*SZ}", after=a))
        L.append(I(f"s_add_u32 s{sT}, s{sKVn if nxt else sKVc}, {tile*8192}", after=a))
        L.append(I(f"buffer_load_dwordx4 v{voff}, s[{srd}:{srd+3}], s{sT} offen{NTKV} lds", tag=tag, after=a, maxgap=mg))
        L.append(I(f"s_add_u32 m0, s{sw}, {base + slot*SZ + PIT - 1024}", after=a))
        L.append(I(f"buffer_load_dwordx4 v{voff}, s[{srd}:{srd+3}], s{sT} offen offset:1024{NTKV} lds", tag=tag, after=a, maxgap=mg + 2 if mg else None))
    def slot_of(which, tile, nxt=False):
        return tile % (cfg.NKS if which == 'K' else cfg.NVS)
    def dma_q(L, grp, sbase, after=(), direct=False, **kw):
        a = list(after)
        L.append(I(f"s_add_u32 s{sT2}, s{sbase}, {grp*4096}", after=a, **kw))
        if grp >= NQL:
            dst = Q[grp] if direct else QX[grp]
            for j in range(4):
                L.append(I(f"buffer_load_dwordx4 {rng('a', dst+4*j, 4)}, v{vOst}, s[{sQ}:{sQ+3}], s{sT2} offen offset:{64*j}{' nt' if cfg.nt_q else ''}", after=a, **kw))
                L[-1].lat = 1
            return
        L.append(I(f"s_add_u32 m0, s{sQw}, {grp*4096}", after=a, **kw))
        for j in range(4):
            vo = voffK
            if cfg.qswz and j:
                vo = TM[j % 2]
                L.append(I(f"v_xor_b32 v{vo}, {64*j}, v{voffK}", after=a, **kw))
            L.append(I(f"buffer_load_dwordx4 v{vo}, s[{sQ}:{sQ+3}], s{sT2} offen offset:{1024*j}{' nt' if cfg.nt_q else ''} lds", tag=('Q', grp), after=a, **kw))
    gid = [0]
    def read_k(L, tile, kb, after=(), maxgap=None):
        gid[0] += 1
        for s in range(4):
            L.append(I(f"ds_read_b128 {rng('a', FR[4*kb+s], 4)}, v{vKrd} offset:{KB0 + slot_of('K', tile)*KS + kb*4*KP + 64*s}",
                       after=list(after), grp=gid[0], glue=(s > 0), maxgap=maxgap))
    def read_v(L, tile, e, after=()):
        gid[0] += 1
        for o in range(2):
            for u in range(2):
                L.append(I(f"ds_read_b64_tr_b16 {rng('a', FR[2*e+o] + 2*u, 2)}, v{vVrd[e]} offset:{slot_of('V', tile)*VS + u*4*VP + 8*o}",
                           after=list(after), grp=gid[0], glue=(o + u > 0)))
    def read_q(L, qb, direct=False, mg=None, after=()):
        gid[0] += 1
        if qb >= NQL:
            if not direct:
                for r in range(16): L.append(I(f"v_accvgpr_mov_b32 a{Q[qb]+r}, a{QX[qb]+r}", maxgap=mg))
            return
        if cfg.qswz and qb == 0:
            L.append(I(f"v_mbcnt_lo_u32_b32 v{QA[0]}, -1, 0")); L.append(I(f"v_mbcnt_hi_u32_b32 v{QA[0]}, -1, v{QA[0]}"))
            L.append(I(f"v_bfe_u32 v{QA[0]}, v{QA[0]}, 2, 2")); L.append(I(f"v_lshl_add_u32 v{QA[0]}, v{QA[0]}, 6, v{vQrd}"))
            for s in range(1, 4): L.append(I(f"v_xor_b32 v{QA[s]}, {64*s}, v{QA[0]}"))
        for s in range(4):
            ad = f"v{QA[s]} offset:{qb*4096}" if cfg.qswz else f"v{vQrd} offset:{qb*4096 + 64*s}"
            L.append(I(f"ds_read_b128 {rng('a', Q[qb]+4*s, 4)}, {ad}",
                       grp=gid[0], glue=(s > 0), waits=[('Q', qb)] if s == 0 else None, maxgap=mg, after=list(after)))
    def qk_chain(L, buf, kb, qb):
        d = rng('v', S[buf][qb] + 4 * kb, 4)
        for s in range(4):
            L.append(I(f"{MF} {d}, {rng('a', FR[4*kb+s], 4)}, {rng('a', Q[qb]+4*s, 4)}, {d if s else '0'}"))
    def softmax_quad(L, buf, kb, qb):
        b = S[buf][qb] + 4 * kb; pb = S[buf][qb] + 2 * kb
        wi = getattr(cfg, 'whatif', '')
        if wi != 'nofma':
            for k in range(4): L.append(I(f"v_fma_f32 v{b+k}, v{b+k}, s{sC}, v{NM[qb]}"))
        for k in range(4): L.append(I(f"v_exp_f32 v{b+k}, v{b+k}" if wi != 'noexp' else f"v_mul_f32 v{b+k}, 0.5, v{b+k}"))
        L.append(I(f"v_cvt_pk_bf16_f32 v{pb}, v{b}, v{b+1}"))
        L.append(I(f"v_cvt_pk_bf16_f32 v{pb+1}, v{b+2}, v{b+3}"))
    def rowmax(L, buf, qb):
        b = S[buf][qb]; t, u = TM
        L.append(I(f"v_max3_f32 v{t}, v{b}, v{b+1}, v{b+2}"))
        L.append(I(f"v_max_f32 v{t}, v{t}, v{b+3}"))
        L.append(I(f"v_mov_b32 v{u}, v{t}"))
        L.append(I(f"v_permlane32_swap_b32 v{t}, v{u}"))
        L.append(I(f"v_max_f32 v{t}, v{t}, v{u}"))
        L.append(I(f"v_mov_b32 v{u}, v{t}"))
        L.append(I(f"v_permlane16_swap_b32 v{t}, v{u}"))
        L.append(I(f"v_max_f32 v{t}, v{t}, v{u}"))
        L.append(I(f"v_mul_f32 v{NM[qb]}, -v{t}, s{sC}"))
    def msum(L, buf, first):
        if getattr(cfg, 'whatif', '') == 'nomsum' and not first: return
        for qb in range(NQ):
            d = rng('a', LS[qb], 4)
            L.append(I(f"{MF} {d}, {rng('a', ONES, 4)}, {rng('v', S[buf][qb], 4)}, {'0' if first else d}"))
    def pv_db(L, buf, db, first):
        for qb in range(NQ):
            d = rng(O[qb][0], O[qb][1] + 4 * db, 4)
            L.append(I(f"{MF} {d}, {rng('a', FR[db], 4)}, {rng('v', S[buf][qb], 4)}, {'0' if first else d}"))
    tpi = [0]
    def epi_l(L, sbit_update=True):
        pass
    def epi_unit(L, qb, e, sbase, direct=False):
        f, b = O[qb]; tp = TP[tpi[0] % 2]; tpi[0] += 1
        ri = RINV[qb % 2]
        for o in range(2):
            base = b + 4 * (2 * e + o)
            if f == 'v':
                for r in range(4): L.append(I(f"v_mul_f32 v{base+r}, v{base+r}, v{ri}"))
                src = base
            else:
                for r in range(4): L.append(I(f"v_accvgpr_read_b32 v{TA+r}, a{base+r}"))
                for r in range(4): L.append(I(f"v_mul_f32 v{TA+r}, v{TA+r}, v{ri}"))
                src = TA
            L.append(I(f"v_cvt_pk_bf16_f32 v{tp+2*o}, v{src}, v{src+1}"))
            L.append(I(f"v_cvt_pk_bf16_f32 v{tp+2*o+1}, v{src+2}, v{src+3}"))
        if qb < NQL and not direct:
            L.append(I(f"ds_write_b128 v{vQrd}, {rng('v', tp, 4)} offset:{qb*4096 + 64*e}"))
            W[qb].append(L[-1])
        else:
            L.append(I(f"s_add_u32 s{sOp}, s{sbase}, {qb*4096}"))
            L.append(I(f"buffer_store_dwordx4 {rng('v', tp, 4)}, v{vOst}, s[{sO}:{sO+3}], s{sOp} offen offset:{64*e}{cfg.o_pol}", tag=('O',)))
    W = defaultdict(list)
    DT = [TP[0], TP[1], TA]
    def drain(L, qb, sbase, after=()):
        st = []
        L.append(I(f"s_add_u32 s{sOp}, s{sbase}, {qb*4096}"))
        for j in range(4):
            t = DT[tpi[0] % 3]; tpi[0] += 1
            L.append(I(f"ds_read_b128 {rng('v', t, 4)}, v0 offset:{qb*4096 + 1024*j}", after=list(after)))
            L.append(I(f"buffer_store_dwordx4 {rng('v', t, 4)}, v{voffK}, s[{sO}:{sO+3}], s{sOp} offen offset:{1024*j}{cfg.o_pol}", tag=('O',)))
            st.append(L[-1])
        return st
    def epi_rinv(L, qb, check):
        ri = RINV[qb % 2]
        L.append(I(f"v_accvgpr_read_b32 v{ri}, a{LS[qb]}"))
        if check:
            L.append(I(f"v_cmp_nge_f32 vcc, s{sThr}, v{ri}"))
            L.append(I(f"s_cmp_lg_u64 vcc, 0"))
            L.append(I(f"s_cselect_b32 s{sOn}, s{sBit}, 0", glue=True))
            L.append(I(f"s_or_b32 s{sFlag}, s{sFlag}, s{sOn}"))
        L.append(I(f"v_rcp_f32 v{ri}, v{ri}"))
    def epilogue(L, es, sbase, check):
        for qb in range(NQ):
            epi_rinv(L, qb, check)
            for e in es: epi_unit(L, qb, e, sbase)

    def glue0(L, start, gap):
        for k, x in enumerate(L[start:]):
            x.glue = k > 0; x.mingap = gap; x.maxgap = gap
    def pstamp(k):
        if cfg.stamps == 2:
            for t in ("s_memtime s[68:69]", f"s_add_u32 s70, s71, {256 + 4*k}", "s_waitcnt lgkmcnt(0)", "s_sub_u32 s68, s68, s64",
                      f"v_mov_b32 v{TM[0]}, s68", f"buffer_store_dword v{TM[0]}, off, s[72:75], s70"): P(t)
    pstamp(0)
    dma_kv(pro, 'K', 0, False)
    npre = cfg.npre
    dma_q(pro, 0, sOc, direct=True)
    dma_kv(pro, 'K', 1, False)
    for g in range(1, npre): dma_q(pro, g, sOc, direct=True)
    pstamp(1)
    P("s_barrier", waits=[('K', 0)])
    pstamp(2)
    p2 = []
    read_k(p2, 0, 0); read_k(p2, 0, 1)
    late = [('V', 0), ('K', 2), ('V', 1), ('K', 3), ('V', 2)]
    for kb in range(2):
        for qb in range(NQ):
            if kb == 0:
                if qb + npre < NQ:
                    st = len(p2); dma_q(p2, qb + npre, sOc, direct=True); glue0(p2, st, max(4 * qb - 1, -1))
                read_q(p2, qb, direct=True, after=[x for x in p2 if x.tag == ('Q', qb)])
            qk_chain(p2, 0, kb, qb)
            if kb == 0: rowmax(p2, 0, qb)
            if kb == 1 and qb < len(late):
                st = len(p2); w, t = late[qb]; dma_kv(p2, w, t, False); glue0(p2, st, 24 + 4 * qb)
            if kb == 0 or qb < NQ - cfg.ndefer: softmax_quad(p2, 0, kb, qb)
    b2 = I("s_barrier", pin=True, waits=[('K', 1)]); p2.append(b2)
    read_k(p2, 1, 0, after=[b2])
    pro += schedule(p2, lat_lds=cfg.lat_lds)
    if cfg.stamps == 3:
        for t in ("s_memtime s[78:79]", "s_waitcnt lgkmcnt(0)", "s_sub_u32 s78, s78, s64"): P(t)
    pstamp(3)
    segs['pro'] = pro

    def glue(L, start, gap=None):
        for k, x in enumerate(L[start:]):
            x.glue = k > 0
            if gap is not None: x.mingap = gap; x.maxgap = gap
    def glue_split(L, start, gap, bs, sp):
        seg = L[start:]; del L[start:]
        first = next(k for k, x in enumerate(seg) if x.kind == 'ldsr')
        pre, rd = seg[:first], seg[first:]
        for k in range(0, len(rd), bs):
            st = len(L)
            L.extend((pre if k == 0 else []) + rd[k:k + bs])
            glue(L, st, gap + (k // bs) * sp)
    def fill_m0(L, start):
        seg = L[start:]
        k = 0
        while k + 1 < len(seg):
            if 'm0' in seg[k].wr and seg[k+1].kind == 'dma':
                j = next((x for x in range(k + 2, len(seg)) if seg[x].kind == 'ldsr'), None)
                if j is not None:
                    seg.insert(k + 1, seg.pop(j))
            k += 1
        L[start:] = seg
    def touch(L, lo):
        L.append(I(f"touch {rng('a', FR[lo], 16)}"))
    def drain_rd(L, qb, j, t):
        L.append(I(f"ds_read_b128 {rng('v', t, 4)}, v0 offset:{qb*4096 + 1024*j}"))
    def drain_st(L, qb, j, t, sbase):
        L.append(I(f"s_add_u32 s{sOp}, s{sbase}, {qb*4096}"))
        L.append(I(f"buffer_store_dwordx4 {rng('v', t, 4)}, v{voffK}, s[{sO}:{sO+3}], s{sOp} offen offset:{1024*j}{cfg.o_pol}", tag=('O',)))
    def iteration(i, variant=''):
        L = []
        nt = (i + 1) % 16; nb = (i + 1) % 2; cb = i % 2
        last = (variant == 'L')
        W.clear()
        dq = [g for g in range(NQL) if cfg.drain_it[g] == i]
        qq = [g for g in range(NQ) if cfg.qdma_it[g] == i]
        dq = dq[0] if dq else None; qq = qq[0] if qq else None
        if last:
            for qb in range(NQ - cfg.ndefer, NQ): softmax_quad(L, cb, 1, qb)
            bar = I("s_barrier", pin=True, waits=[('V', i)]); L.append(bar)
            for e in range(4): read_v(L, i, e, after=[bar])
            msum(L, cb, False)
            for qb in cfg.last_order:
                for db in range(8):
                    d = rng(O[qb][0], O[qb][1] + 4 * db, 4)
                    L.append(I(f"{MF} {d}, {rng('a', FR[db], 4)}, {rng('v', S[cb][qb], 4)}, {d}"))
                epi_rinv(L, qb, True)
                for e in range(4): epi_unit(L, qb, e, sOc)
                if qb < NQL: drain(L, qb, sOc, after=W[qb])
            return schedule(L, lat_lds=cfg.lat_lds, rate_scale=cfg.rate_scale)
        G = cfg.pos
        st = len(L); touch(L, 0); read_k(L, nt, 1)
        glue_split(L, st, -1, cfg.kbs, cfg.ksp)
        if dq is not None:
            st = len(L)
            for j in range(3): drain_rd(L, dq, j, DT[j])
            glue(L, st, G['drd'])
        for qb in range(NQ - cfg.ndefer, NQ): softmax_quad(L, cb, 1, qb)
        if qq is not None and qq < NQL and cfg.qswz:
            XT = [TM[0], TM[1], TA]
            for j in range(1, 4): L.append(I(f"v_xor_b32 v{XT[j-1]}, {64*j}, v{voffK}"))
        n = 0
        for kb in range(2):
            for qb in range(NQ):
                qk_chain(L, nb, kb, qb); n += 4
                if i == 15 and kb == 0: rowmax(L, nb, qb)
                if kb == 0 or qb < NQ - cfg.ndefer: softmax_quad(L, nb, kb, qb)
                if i == 14 and kb == 1: read_q(L, qb, mg=25 + 4 * qb + 10 + 4 * qb)
                if n == cfg.bar_pos:
                    bar = I("s_barrier", pin=True, waits=[('V', i), ('K', (i + 2) % 16)]); L.append(bar)
                    for which, t, g0 in (('K', i + 4, G['dk']), ('V', i + 3, G['dv'])):
                        st = len(L); dma_kv(L, which, t % 16, t >= 16, after=[bar])
                        if cfg.dma_pair: glue(L, st, g0)
                        else:
                            tail = L[st + 3:]; del L[st + 3:]
                            glue(L, st, g0); st = len(L); L.extend(tail); glue(L, st, g0 + cfg.dma_sp)
                    if qq is not None:
                        st = len(L)
                        ntq = ' nt' if cfg.nt_q else ''
                        if qq < NQL: L.append(I(f"s_add_u32 m0, s{sQw}, {qq*4096}"))
                        L.append(I(f"s_add_u32 s{sT2}, s{sQn}, {qq*4096}"))
                        for j in range(4):
                            if qq < NQL:
                                vo = XT[j-1] if (j and cfg.qswz) else voffK
                                L.append(I(f"buffer_load_dwordx4 v{vo}, s[{sQ}:{sQ+3}], s{sT2} offen offset:{1024*j}{ntq} lds", tag=('Q', qq)))
                            else:
                                L.append(I(f"buffer_load_dwordx4 {rng('a', QX[qq]+4*j, 4)}, v{vOst}, s[{sQ}:{sQ+3}], s{sT2} offen offset:{64*j}{ntq}"))
                        glue(L, st, G['dq'])
            if kb == 0:
                st = len(L); touch(L, 4)
                if dq is not None: drain_st(L, dq, 0, DT[0], sOb)
                read_v(L, i, 0, after=[bar]); glue_split(L, st, 24, cfg.vbs, cfg.vsp)
                st = len(L)
                if dq is not None: drain_st(L, dq, 1, DT[1], sOb)
                read_v(L, i, 1, after=[bar])
                if dq is not None: drain_rd(L, dq, 3, DT[0])
                glue_split(L, st, G['v1'], cfg.vbs, cfg.vsp)
        if i == 0 and variant != 'F':
            epilogue(L, range(cfg.epi_e15, 4), sOb, False)
        st = len(L); touch(L, 0)
        if dq is not None: drain_st(L, dq, 2, DT[2], sOb)
        read_v(L, i, 2, after=[bar]); glue_split(L, st, 48, cfg.vbs, cfg.vsp)
        st = len(L)
        if dq is not None: drain_st(L, dq, 3, DT[0], sOb)
        read_v(L, i, 3, after=[bar]); glue_split(L, st, G['v3'], cfg.vbs, cfg.vsp)
        msum(L, cb, i == 0)
        for db in range(8):
            pv_db(L, cb, db, i == 0)
            if db == 3:
                st = len(L); touch(L, 4)
                read_k(L, (i + 2) % 16, 0, after=[bar])
                glue_split(L, st, 48 + 6 + 24, cfg.kbs, cfg.ksp)
        if i == 15:
            epilogue(L, range(0, cfg.epi_e15), sOc, True)
        return schedule(L, lat_lds=cfg.lat_lds, rate_scale=cfg.rate_scale)

    _iteration = iteration
    def stamp(slot_expr):
        return [I("s_memtime s[68:69]")] + [I(t) for t in slot_expr] + [I("s_waitcnt lgkmcnt(0)"), I("s_sub_u32 s68, s68, s64"),
                I(f"v_mov_b32 v{TM[0]}, s68"), I(f"buffer_store_dword v{TM[0]}, off, s[72:75], s70")]
    if cfg.stamps == 2:
        def iteration(i, variant=''):
            return stamp([f"s_lshl_b32 s70, s{sBlk}, 6", f"s_add_u32 s70, s70, s71", f"s_add_u32 s70, s70, {4*i}"]) + _iteration(i, variant)
    segs['it0F'] = iteration(0, 'F') + [I("s_branch L_it1")]
    for i in range(16):
        segs[f'it{i}'] = iteration(i)
    segs['it14'] += [I(f"s_cmp_eq_u32 s{sBlk}, 3"), I("s_cbranch_scc1 L_it15L")]
    adv = [f"s_mov_b32 s{sOb}, s{sOc}", f"s_mov_b32 s{sOc}, s{sQn}", f"s_mov_b32 s{sKVc}, s{sKVn}",
           f"s_add_u32 s{sBlk}, s{sBlk}, 1", f"s_lshl_b32 s{sBit}, s{sBit}, 1",
           f"s_add_u32 s{sKVn}, s{sKVn}, {16 << 17}", f"s_add_u32 s{sQn}, s{sQn}, {16*768*256}",
           f"s_cmp_eq_u32 s{sBlk}, 3",
           f"s_cselect_b32 s{sKVn}, 0x20000000, s{sKVn}", f"s_cselect_b32 s{sQn}, 0x20000000, s{sQn}",
           "s_branch L_it0"]
    segs['it15'] += [I(t) for t in adv]
    segs['it15L'] = iteration(15, 'L')

    path = ['pro', 'it0F'] + [f'it{i}' for i in range(1, 16)] + [f'it{i}' for i in range(16)] + \
           [f'it{i}' for i in range(15)] + ['it15L']
    st = WaitState(); reqs = {}
    for name in path:
        r = compute_waits(segs[name], st)
        reqs[name] = merge_req(reqs.get(name, {}), r)
    for name in reqs: segs[name] = insert_waits(segs[name], reqs[name])
    nn = 0
    for rep in range(2):
        for a, b in zip([None] + path[:-1], path):
            segs[b], k = fix_hazards(segs[b], history=segs[a][-30:] if a else ()); nn += k
    full = sum((segs[n] for n in path), [])
    bad = check_waits(full, WaitState()); assert not bad, bad[:5]
    bad = check_hazards(full); assert not bad, bad[:5]
    cnt = defaultdict(int)
    for i in range(16):
        for c in segs[f'it{i}']: cnt[c.kind] += 1
    print("per-block counts", dict(cnt), "nops inserted", nn, file=sys.stderr)

    out = [HEADER]
    T = lambda seg: [c.text for c in segs[seg] if c.kind != 'touch']
    out += T('pro') + T('it0F')
    out += [".p2align 6", "L_it0:"] + T('it0') + ["L_it1:"]
    for i in range(1, 16): out += [f"; ---- iteration {i}"] + T(f'it{i}')
    out += ["L_it15L:"] + T('it15L')
    fin = []
    if getattr(cfg, 'diag', None):
        fin += ["s_mov_b32 s50, 48", "L_diag:"]
        for j in range(32):
            if cfg.diag == 'nop': fin += ["s_nop 3"]
            elif cfg.diag == 'm16': fin += [f"{MF} v[{32+4*(j%16)}:{35+4*(j%16)}], a[{4*(j%8)}:{4*(j%8)+3}], a[{32+4*(j%24)}:{35+4*(j%24)}], v[{32+4*(j%16)}:{35+4*(j%16)}]"]
            elif cfg.diag == 'm32' and j % 2 == 0: fin += [f"v_mfma_f32_32x32x16_bf16 v[{32+16*((j//2)%4)}:{47+16*((j//2)%4)}], a[{4*(j%8)}:{4*(j%8)+3}], a[{32+4*(j%24)}:{35+4*(j%24)}], v[{32+16*((j//2)%4)}:{47+16*((j//2)%4)}]"]
        fin += ["s_sub_u32 s50, s50, 1", "s_cmp_lg_u32 s50, 0", "s_cbranch_scc1 L_diag", "s_nop 15"]
    if cfg.stamps: fin += ["s_waitcnt vmcnt(0) lgkmcnt(0)"]
    if cfg.stamps:
        fin += ["s_memtime s[68:69]", "s_memrealtime s[70:71]", "s_waitcnt lgkmcnt(0)",
                "s_sub_u32 s68, s68, s64", "s_sub_u32 s70, s70, s66",
                f"s_lshl_b32 s3, s{sWave}, 4", "s_lshl_b32 s71, s2, 8", "s_add_u32 s3, s3, s71"] + \
               (["s_mul_i32 s3, s2, 193", "s_lshr_b32 s71, s3, 14", "s_mul_i32 s3, s71, 85", "s_sub_u32 s3, s2, s3", f"s_or_b32 s3, s3, s{sWave}",
                 "s_lshl_b32 s3, s3, 8", "s_lshl_b32 s71, s71, 4", "s_add_u32 s3, s3, s71"] if cfg.stamps == 3 else []) + \
               ["v_mov_b32 v36, s68", "v_mov_b32 v37, s70", "v_mov_b32 v38, s66", f"v_mov_b32 v39, s{78 if cfg.stamps == 3 else sFlag}",
                "buffer_store_dwordx4 v[36:39], off, s[72:75], s3", "s_waitcnt vmcnt(0)"]
    out += fin
    out += [f"s_cmp_lg_u32 s{sFlag}, 0", "s_cbranch_scc1 L_redo", "L_end:", "s_endpgm", "L_main_end:"]
    def lin(L):
        st = WaitState()
        L = insert_waits(L, compute_waits(L, st))
        L, _ = fix_hazards(L)
        return [c.text for c in L if c.kind != 'touch'] + ["s_waitcnt vmcnt(0) lgkmcnt(0)", "s_nop 15"]
    RB = 40960
    R = []
    A = lambda t, **k: R.append(I(t, **k))
    assert KS + VS <= NQL * 4096
    A("s_waitcnt vmcnt(0) lgkmcnt(0)")
    A(f"s_mov_b32 s{sRb}, s{sQw}")
    A(f"v_add_u32 v{vKrd}, s{sRb}, v{vKrd}")
    A(f"s_add_u32 s{sT}, s{sRb}, {KS - VB0 + (1 << 32) if KS < VB0 else KS - VB0}")
    for e in range(4): A(f"v_add_u32 v{vVrd[e]}, s{sT}, v{vVrd[e]}")
    out += ["s_nop 15", "L_redo:"] + lin(R)
    out += ["L_redo_blk:", f"s_and_b32 s{sT}, s{sFlag}, 1", "s_cbranch_scc0 L_redo_next"]
    def rdma(L, which):
        srd, voff, base, PIT = (sK, voffK, 0, KP) if which == 'K' else (sV, voffV, KS, VP)
        for a in range(8):
            L.append(I(f"s_add_u32 m0, s{sRb}, {base + a*PIT}"))
            L.append(I(f"s_add_u32 s{sT}, s{sRk}, {a*1024}"))
            L.append(I(f"buffer_load_dwordx4 v{voff}, s[{srd}:{srd+3}], s{sT} offen lds", tag='R'))
    def rread_k(L):
        for f in range(8):
            L.append(I(f"ds_read_b128 {rng('a', FR[f], 4)}, v{vKrd} offset:{(f//4)*4*KP + 64*(f%4)}", waits=['R'] if f == 0 else None))
    MX = [S[1][0] + q for q in range(NQ)]
    R = []
    for qb in range(NQ):
        A(f"s_add_u32 s{sT2}, s{sO0}, {qb*4096}")
        for j in range(4): A(f"buffer_load_dwordx4 {rng('a', Q[qb]+4*j, 4)}, v{vOst}, s[{sQ}:{sQ+3}], s{sT2} offen offset:{64*j}")
        A(f"v_mov_b32 v{MX[qb]}, 0xff800000")
        f, b = O[qb]
        for r in range(32): A(f"v_mov_b32 v{b+r}, 0" if f == 'v' else f"v_accvgpr_write_b32 a{b+r}, 0")
        for r in range(4): A(f"v_accvgpr_write_b32 a{LS[qb]+r}, 0")
    A(f"s_mov_b32 s{sRk}, s{sKV0}"); A(f"s_mov_b32 s{sRt}, 16")
    out += lin(R) + ["L_redo_p1:"]
    R = []
    rdma(R, 'K'); rread_k(R)
    for kb in range(2):
        for qb in range(NQ):
            qk_chain(R, 0, kb, qb)
    for qb in range(NQ):
        b = S[0][qb]
        for r in range(0, 8, 2): A(f"v_max3_f32 v{MX[qb]}, v{MX[qb]}, v{b+r}, v{b+r+1}")
    A(f"s_add_u32 s{sRk}, s{sRk}, 8192"); A(f"s_sub_u32 s{sRt}, s{sRt}, 1")
    out += lin(R) + [f"s_cmp_lg_u32 s{sRt}, 0", "s_cbranch_scc1 L_redo_p1"]
    R = []
    for qb in range(NQ):
        t, u = MX[qb], TM[1]
        for sw in ("v_permlane32_swap_b32", "v_permlane16_swap_b32"):
            A(f"v_mov_b32 v{u}, v{t}"); A(f"{sw} v{t}, v{u}"); A(f"v_max_f32 v{t}, v{t}, v{u}")
        A(f"v_mul_f32 v{NM[qb]}, -v{t}, s{sC}")
    A(f"s_mov_b32 s{sRk}, s{sKV0}"); A(f"s_mov_b32 s{sRt}, 16")
    out += lin(R) + ["L_redo_p2:"]
    R = []
    rdma(R, 'K'); rdma(R, 'V'); rread_k(R)
    for kb in range(2):
        for qb in range(NQ):
            qk_chain(R, 0, kb, qb)
    for kb in range(2):
        for qb in range(NQ): softmax_quad(R, 0, kb, qb)
    for db in range(8):
        for u in range(2):
            A(f"ds_read_b64_tr_b16 {rng('a', FR[db] + 2*u, 2)}, v{vVrd[db//2]} offset:{u*4*VP + 8*(db%2)}")
    msum(R, 0, False)
    for db in range(8): pv_db(R, 0, db, False)
    A(f"s_add_u32 s{sRk}, s{sRk}, 8192"); A(f"s_sub_u32 s{sRt}, s{sRt}, 1")
    out += lin(R) + [f"s_cmp_lg_u32 s{sRt}, 0", "s_cbranch_scc1 L_redo_p2"]
    R = []
    for qb in range(NQ):
        epi_rinv(R, qb, False)
        for e in range(4): epi_unit(R, qb, e, sO0, direct=True)
    out += lin(R)
    out += ["L_redo_next:", f"s_add_u32 s{sKV0}, s{sKV0}, {16 << 17}", f"s_add_u32 s{sO0}, s{sO0}, {16*768*256}",
            f"s_lshr_b32 s{sFlag}, s{sFlag}, 1", f"s_cmp_lg_u32 s{sFlag}, 0", "s_cbranch_scc1 L_redo_blk", "s_endpgm", KD]
    return "\n".join(out) + "\n"

if __name__ == "__main__":
    cfg = Cfg()
    for a in sys.argv[2:]:
        k, v = a.split('='); setattr(cfg, k, eval(v))
    print(build(cfg), file=open(sys.argv[1], 'w'), end='')
```

```python
import sys, struct
from fw import *

HEADER = """; Kernarg layout for this problem (48 bytes, ptrs only, base s[0:1]):
; @launch grid=(256,1,1) block=(256,1,1) lds=163840
.amdgcn_target "amdgcn-amd-amdhsa--gfx950"
.text
.globl standalone__mha_softmax__near_ridge_kernel
.p2align 8
.type standalone__mha_softmax__near_ridge_kernel,@function
standalone__mha_softmax__near_ridge_kernel:"""

KD = """.section .rodata,"a"
.p2align 6
.amdhsa_kernel standalone__mha_softmax__near_ridge_kernel
  .amdhsa_next_free_vgpr 512
  .amdhsa_next_free_sgpr 102
  .amdhsa_accum_offset 256
  .amdhsa_group_segment_fixed_size 0
  .amdhsa_kernarg_size 48
  .amdhsa_user_sgpr_count 2
  .amdhsa_user_sgpr_kernarg_segment_ptr 1
  .amdhsa_system_sgpr_workgroup_id_x 1
.end_amdhsa_kernel"""

def rng(f, b, n): return f"{f}[{b}:{b+n-1}]"
def f32(x): return "0x%08x" % struct.unpack("<I", struct.pack("<f", x))[0]
MF = "v_mfma_f32_16x16x32_bf16"

class Cfg:
    NQ = 6
    NKS = 4; NVS = 4
    NQL = 5
    KP = 1088; VP = 1032
    bar_pos = 12
    lat_lds = 8
    stamps = False
    thr = 2.0 ** 60
    rate_scale = 1.0
    ndefer = 2
    qdma_it = (3, 5, 7, 9, 11, 12)
    drain_it = (1, 2, 4, 6, 8)
    nt_q = True
    o_pol = ''
    nt_kv = True
    codepf = True
    qswz = True
    npre = 6
    dma_pair = False
    delta = 0.0
    exp_enc = ''
    last_order = (5, 4, 0, 1, 2, 3)
    kbs = 2; ksp = 3; vbs = 2; vsp = 3
    dma_sp = 3
    pos = dict(drd=6, dk=14, dv=36, dq=64, v1=30, v3=56)
    epi_e15 = 1

def build(cfg):
    NQ = cfg.NQ; KP = cfg.KP; VP = cfg.VP
    KS = 8 * KP; VS = 8 * VP
    KB0 = 0; VB0 = cfg.NKS * KS; QB0 = VB0 + cfg.NVS * VS
    QB0 = (QB0 + 15) // 16 * 16
    NQL = cfg.NQL
    assert QB0 + 4 * NQL * 4096 <= 163840, QB0
    vKrd, vV0, voffK, voffV, vQrd, vOst = 1, 2, 6, 7, 8, 9
    vVrd = [2, 3, 4, 5]
    RINV = [10, 11]
    TM = [12, 13]
    TP = [20, 24]
    TA = 28
    QA = [TA + s for s in range(4)]
    SA = [[32 + (b * NQ + q) * 4 for q in range(NQ)] for b in range(2)]
    SB = [80 + 4 * q for q in range(NQ)]
    NEGM = [104 + 4 * q for q in range(NQ)]
    S = SA
    def SQ(buf, kb, qb): return SA[buf][qb] if kb == 0 else SB[qb]
    NOV = 4
    O = [('v', 128 + 32 * q) for q in range(NOV)]
    FR = [4 * i for i in range(8)]
    Q = [32 + 16 * q for q in range(NQ)]
    ONES = 128
    LS = [132 + 4 * q for q in range(NQ)]
    O += [('a', 156 + 32 * q) for q in range(NQ - NOV)]
    QX = {q: 220 + 16 * (q - NQL) for q in range(NQL, NQ)}
    sQ, sK, sV, sO = 12, 16, 20, 24
    sWave = 30; sC = 31; sKVc = 32; sKVn = 33; sQn = 34; sOc = 35; sOp = 36; sKw = 37; sVw = 38; sQw = 39
    sT = 40; sT2 = 41; sBlk = 42; sFlag = 43; sThr = 44; sOb = 45; sOn = 46; sBit = 47; sKV0 = 52; sO0 = 53; sRt = 54; sRb = 55; sRk = 56; sDel = 57
    c_scale = (128 ** -0.5) * 1.4426950408889634

    segs = {}
    NTKV = ' nt' if cfg.nt_kv else ''
    pro = []
    P = lambda t, **k: (pro.append(I(t, **k)), pro[-1])[1]
    P("s_cmp_ge_u32 s2, 256"); P("s_cbranch_scc1 L_end")
    P("s_load_dwordx4 s[4:7], s[0:1], 0"); P("s_load_dwordx4 s[8:11], s[0:1], 16")
    if cfg.stamps:
        P(f"s_load_dwordx2 s[60:61], s[0:1], {32 if cfg.stamps == 3 else 40}"); P("s_memtime s[64:65]"); P("s_memrealtime s[66:67]")
    P("v_and_b32 v32, 63, v0")
    P("v_lshrrev_b32 v33, 6, v0")
    P("v_lshrrev_b32 v34, 4, v32")
    P("v_readfirstlane_b32 s30, v33")
    P("v_and_b32 v35, 15, v32")
    if cfg.codepf:
        P("s_getpc_b64 s[48:49]")
        P("L_pc:")
        P("s_bfe_u32 s50, s2, 0x20003"); P("s_mul_i32 s50, s50, 12288")
        P("v_mul_u32_u24 v40, 3072, v33"); P("v_lshl_add_u32 v40, v32, 4, v40"); P("v_add_u32 v40, s50, v40")
        for j in range(3):
            P(f"v_add_u32 v41, {1024*j}, v40"); P("v_min_u32 v41, (L_main_end-L_pc-16), v41")
            P(f"global_load_dwordx4 v[{44+4*j}:{47+4*j}], v41, s[48:49]")
    P("v_xor_b32 v36, v35, v34"); P("v_lshlrev_b32 v36, 4, v36"); P(f"v_lshl_add_u32 v{voffK}, v34, 8, v36")
    P("v_lshlrev_b32 v36, 2, v34"); P("v_xor_b32 v36, v35, v36"); P("v_lshlrev_b32 v36, 4, v36"); P(f"v_lshl_add_u32 v{voffV}, v34, 8, v36")
    P("v_lshrrev_b32 v36, 2, v35")
    P("v_and_b32 v37, 3, v35")
    P("v_xor_b32 v38, v37, v34"); P("v_lshlrev_b32 v38, 4, v38"); P("v_lshl_add_u32 v38, v37, 8, v38")
    P(f"v_mul_u32_u24 v39, {KP}, v36"); P(f"v_add_u32 v{vKrd}, v39, v38")
    P("v_lshl_add_u32 v38, v36, 10, v38")
    P(f"v_mul_u32_u24 v39, {NQL*4096}, v33"); P("v_add_u32 v38, v38, v39"); P(f"v_add_u32 v{vQrd}, {QB0}, v38")
    P(f"v_mul_u32_u24 v38, {VP}, v34"); P("v_lshl_add_u32 v38, v36, 8, v38"); P("v_lshl_add_u32 v38, v37, 4, v38")
    P(f"v_add_u32 v38, {VB0}, v38")
    for e in range(4):
        P(f"v_xor_b32 v39, {e}, v36"); P(f"v_lshl_add_u32 v{vVrd[e]}, v39, 6, v38")
    P("v_lshlrev_b32 v38, 4, v34"); P(f"v_lshl_add_u32 v{vOst}, v35, 8, v38")
    P(f"v_mul_u32_u24 v39, {NQL*4096}, v33"); P("v_lshl_add_u32 v39, v32, 4, v39"); P(f"v_add_u32 v0, {QB0}, v39")
    P("v_mov_b32 v38, 0x3f803f80")
    for r in range(4): P(f"v_accvgpr_write_b32 a{ONES+r}, v38")
    P("s_waitcnt lgkmcnt(0)")
    for base, src, n in ((sQ, 4, 0x6000000), (sK, 6, 0x4000000), (sV, 8, 0x4000000), (sO, 10, 0x6000000)):
        P(f"s_mov_b32 s{base}, s{src}"); P(f"s_mov_b32 s{base+1}, s{src+1}")
        P(f"s_mov_b32 s{base+2}, {n}"); P(f"s_mov_b32 s{base+3}, 0x20000")
    if cfg.stamps:
        for t in ("s_mov_b32 s72, s60", "s_mov_b32 s73, s61", f"s_mov_b32 s74, {64 if cfg.stamps == 3 else 0x1000000}", "s_mov_b32 s75, 0x20000",
                  "s_lshl_b32 s71, s2, 2", f"s_add_u32 s71, s71, s{sWave}", "s_lshl_b32 s71, s71, 9", "s_add_u32 s71, s71, 0x100000"): P(t)
    P(f"s_mov_b32 s{sDel}, {f32(cfg.delta / c_scale)}")
    P(f"s_mov_b32 s{sC}, {f32(c_scale)}"); P(f"s_mov_b32 s{sThr}, {f32(cfg.thr)}")
    P("s_and_b32 s4, s2, 7"); P("s_lshl_b32 s4, s4, 6"); P("s_lshr_b32 s5, s2, 4"); P("s_add_u32 s4, s4, s5")
    P("s_bfe_u32 s5, s2, 0x10003")
    P(f"s_lshl_b32 s6, s{sWave}, 11")
    P(f"s_lshl_b32 s{sKV0}, s4, 17"); P(f"s_add_u32 s{sKVc}, s{sKV0}, s6")
    P(f"s_add_u32 s{sKVn}, s{sKVc}, {16 << 17}")
    P("s_mul_i32 s6, s4, 768"); P("s_mul_i32 s7, s5, 384"); P("s_add_u32 s6, s6, s7")
    P(f"s_mul_i32 s7, s{sWave}, 96"); P("s_add_u32 s6, s6, s7"); P(f"s_lshl_b32 s{sOc}, s6, 8")
    P(f"s_mov_b32 s{sOb}, 0x20000000"); P(f"s_mov_b32 s{sO0}, s{sOc}")
    P(f"s_add_u32 s{sQn}, s{sOc}, {16*768*256}")
    P(f"s_mul_i32 s{sKw}, s{sWave}, {2*KP}")
    P(f"s_mul_i32 s{sVw}, s{sWave}, {2*VP}"); P(f"s_add_u32 s{sVw}, s{sVw}, {VB0}")
    P(f"s_mul_i32 s{sQw}, s{sWave}, {NQL*4096}"); P(f"s_add_u32 s{sQw}, s{sQw}, {QB0}")
    P(f"s_mov_b32 s{sBlk}, 0"); P(f"s_mov_b32 s{sFlag}, 0"); P(f"s_mov_b32 s{sBit}, 1")

    def dma_kv(L, which, tile, nxt, after=(), mg=None):
        srd, sw, voff, base, SZ, PIT, NS = ((sK, sKw, voffK, KB0, KS, KP, cfg.NKS) if which == 'K'
                                            else (sV, sVw, voffV, 0, VS, VP, cfg.NVS))
        gt = tile + (16 if nxt else 0)
        slot = slot_of(which, tile, nxt)
        tag = (which, tile)
        a = list(after)
        L.append(I(f"s_add_u32 m0, s{sw}, {base + slot*SZ}", after=a))
        L.append(I(f"s_add_u32 s{sT}, s{sKVn if nxt else sKVc}, {tile*8192}", after=a))
        L.append(I(f"buffer_load_dwordx4 v{voff}, s[{srd}:{srd+3}], s{sT} offen{NTKV} lds", tag=tag, after=a, maxgap=mg))
        L.append(I(f"s_add_u32 m0, s{sw}, {base + slot*SZ + PIT - 1024}", after=a))
        L.append(I(f"buffer_load_dwordx4 v{voff}, s[{srd}:{srd+3}], s{sT} offen offset:1024{NTKV} lds", tag=tag, after=a, maxgap=mg + 2 if mg else None))
    def slot_of(which, tile, nxt=False):
        return tile % (cfg.NKS if which == 'K' else cfg.NVS)
    def dma_q(L, grp, sbase, after=(), direct=False, **kw):
        a = list(after)
        L.append(I(f"s_add_u32 s{sT2}, s{sbase}, {grp*4096}", after=a, **kw))
        if grp >= NQL:
            dst = Q[grp] if direct else QX[grp]
            for j in range(4):
                L.append(I(f"buffer_load_dwordx4 {rng('a', dst+4*j, 4)}, v{vOst}, s[{sQ}:{sQ+3}], s{sT2} offen offset:{64*j}{' nt' if cfg.nt_q else ''}", after=a, **kw))
                L[-1].lat = 1
            return
        L.append(I(f"s_add_u32 m0, s{sQw}, {grp*4096}", after=a, **kw))
        for j in range(4):
            vo = voffK
            if cfg.qswz and j:
                vo = TM[j % 2]
                L.append(I(f"v_xor_b32 v{vo}, {64*j}, v{voffK}", after=a, **kw))
            L.append(I(f"buffer_load_dwordx4 v{vo}, s[{sQ}:{sQ+3}], s{sT2} offen offset:{1024*j}{' nt' if cfg.nt_q else ''} lds", tag=('Q', grp), after=a, **kw))
    gid = [0]
    def read_k(L, tile, kb, after=(), maxgap=None):
        gid[0] += 1
        for s in range(4):
            L.append(I(f"ds_read_b128 {rng('a', FR[4*kb+s], 4)}, v{vKrd} offset:{KB0 + slot_of('K', tile)*KS + kb*4*KP + 64*s}",
                       after=list(after), grp=gid[0], glue=(s > 0), maxgap=maxgap))
    def read_v(L, tile, e, after=()):
        gid[0] += 1
        for o in range(2):
            for u in range(2):
                L.append(I(f"ds_read_b64_tr_b16 {rng('a', FR[2*e+o] + 2*u, 2)}, v{vVrd[e]} offset:{slot_of('V', tile)*VS + u*4*VP + 8*o}",
                           after=list(after), grp=gid[0], glue=(o + u > 0)))
    def read_q(L, qb, direct=False, mg=None, after=()):
        gid[0] += 1
        if qb >= NQL:
            if not direct:
                for r in range(16): L.append(I(f"v_accvgpr_mov_b32 a{Q[qb]+r}, a{QX[qb]+r}", maxgap=mg))
            return
        if cfg.qswz and qb == 0:
            L.append(I(f"v_mbcnt_lo_u32_b32 v{QA[0]}, -1, 0")); L.append(I(f"v_mbcnt_hi_u32_b32 v{QA[0]}, -1, v{QA[0]}"))
            L.append(I(f"v_bfe_u32 v{QA[0]}, v{QA[0]}, 2, 2")); L.append(I(f"v_lshl_add_u32 v{QA[0]}, v{QA[0]}, 6, v{vQrd}"))
            for s in range(1, 4): L.append(I(f"v_xor_b32 v{QA[s]}, {64*s}, v{QA[0]}"))
        for s in range(4):
            ad = f"v{QA[s]} offset:{qb*4096}" if cfg.qswz else f"v{vQrd} offset:{qb*4096 + 64*s}"
            L.append(I(f"ds_read_b128 {rng('a', Q[qb]+4*s, 4)}, {ad}",
                       grp=gid[0], glue=(s > 0), waits=[('Q', qb)] if s == 0 else None, maxgap=mg, after=list(after)))
    def qk_chain(L, buf, kb, qb, cinit=True):
        d = rng('v', SQ(buf, kb, qb), 4)
        c0 = rng('v', NEGM[qb], 4) if cinit else '0'
        for s in range(4):
            L.append(I(f"{MF} {d}, {rng('a', FR[4*kb+s], 4)}, {rng('a', Q[qb]+4*s, 4)}, {d if s else c0}"))
    def softmax_quad(L, buf, kb, qb, raw=False):
        b = SQ(buf, kb, qb); pb = SA[buf][qb] + 2 * kb
        if raw:
            for k in range(4): L.append(I(f"v_add_f32 v{b+k}, v{b+k}, v{NEGM[qb]}"))
        for k in range(4): L.append(I(f"v_mul_f32 v{b+k}, s{sC}, v{b+k}"))
        for k in range(4): L.append(I(f"v_exp_f32{cfg.exp_enc} v{b+k}, v{b+k}"))
        L.append(I(f"v_cvt_pk_bf16_f32 v{pb}, v{b}, v{b+1}"))
        L.append(I(f"v_cvt_pk_bf16_f32 v{pb+1}, v{b+2}, v{b+3}"))
    def rowmax(L, buf, qb):
        b = SA[buf][qb]; t, u = TM
        L.append(I(f"v_max3_f32 v{t}, v{b}, v{b+1}, v{b+2}"))
        L.append(I(f"v_max_f32 v{t}, v{t}, v{b+3}"))
        L.append(I(f"v_mov_b32 v{u}, v{t}"))
        L.append(I(f"v_permlane32_swap_b32 v{t}, v{u}"))
        L.append(I(f"v_max_f32 v{t}, v{t}, v{u}"))
        L.append(I(f"v_mov_b32 v{u}, v{t}"))
        L.append(I(f"v_permlane16_swap_b32 v{t}, v{u}"))
        L.append(I(f"v_max_f32 v{t}, v{t}, v{u}"))
        for r in range(4): L.append(I(f"v_sub_f32 v{NEGM[qb]+r}, s{sDel}, v{t}"))
    def msum(L, buf, first):
        if getattr(cfg, 'whatif', '') == 'nomsum' and not first: return
        for qb in range(NQ):
            d = rng('a', LS[qb], 4)
            L.append(I(f"{MF} {d}, {rng('a', ONES, 4)}, {rng('v', S[buf][qb], 4)}, {'0' if first else d}"))
    def pv_db(L, buf, db, first):
        for qb in range(NQ):
            d = rng(O[qb][0], O[qb][1] + 4 * db, 4)
            L.append(I(f"{MF} {d}, {rng('a', FR[db], 4)}, {rng('v', S[buf][qb], 4)}, {'0' if first else d}"))
    tpi = [0]
    def epi_l(L, sbit_update=True):
        pass
    def epi_unit(L, qb, e, sbase, direct=False):
        f, b = O[qb]; tp = TP[tpi[0] % 2]; tpi[0] += 1
        ri = RINV[qb % 2]
        for o in range(2):
            base = b + 4 * (2 * e + o)
            if f == 'v':
                for r in range(4): L.append(I(f"v_mul_f32 v{base+r}, v{base+r}, v{ri}"))
                src = base
            else:
                for r in range(4): L.append(I(f"v_accvgpr_read_b32 v{TA+r}, a{base+r}"))
                for r in range(4): L.append(I(f"v_mul_f32 v{TA+r}, v{TA+r}, v{ri}"))
                src = TA
            L.append(I(f"v_cvt_pk_bf16_f32 v{tp+2*o}, v{src}, v{src+1}"))
            L.append(I(f"v_cvt_pk_bf16_f32 v{tp+2*o+1}, v{src+2}, v{src+3}"))
        if qb < NQL and not direct:
            L.append(I(f"ds_write_b128 v{vQrd}, {rng('v', tp, 4)} offset:{qb*4096 + 64*e}"))
            W[qb].append(L[-1])
        else:
            L.append(I(f"s_add_u32 s{sOp}, s{sbase}, {qb*4096}"))
            L.append(I(f"buffer_store_dwordx4 {rng('v', tp, 4)}, v{vOst}, s[{sO}:{sO+3}], s{sOp} offen offset:{64*e}{cfg.o_pol}", tag=('O',)))
    W = defaultdict(list)
    DT = [TP[0], TP[1], TA]
    def drain(L, qb, sbase, after=()):
        st = []
        L.append(I(f"s_add_u32 s{sOp}, s{sbase}, {qb*4096}"))
        for j in range(4):
            t = DT[tpi[0] % 3]; tpi[0] += 1
            L.append(I(f"ds_read_b128 {rng('v', t, 4)}, v0 offset:{qb*4096 + 1024*j}", after=list(after)))
            L.append(I(f"buffer_store_dwordx4 {rng('v', t, 4)}, v{voffK}, s[{sO}:{sO+3}], s{sOp} offen offset:{1024*j}{cfg.o_pol}", tag=('O',)))
            st.append(L[-1])
        return st
    def epi_rinv(L, qb, check):
        ri = RINV[qb % 2]
        L.append(I(f"v_accvgpr_read_b32 v{ri}, a{LS[qb]}"))
        if check:
            L.append(I(f"v_cmp_nge_f32 vcc, s{sThr}, v{ri}"))
            L.append(I(f"s_cmp_lg_u64 vcc, 0"))
            L.append(I(f"s_cselect_b32 s{sOn}, s{sBit}, 0", glue=True))
            L.append(I(f"s_or_b32 s{sFlag}, s{sFlag}, s{sOn}"))
        L.append(I(f"v_rcp_f32 v{ri}, v{ri}"))
    def epilogue(L, es, sbase, check):
        for qb in range(NQ):
            epi_rinv(L, qb, check)
            for e in es: epi_unit(L, qb, e, sbase)

    def glue0(L, start, gap):
        for k, x in enumerate(L[start:]):
            x.glue = k > 0; x.mingap = gap; x.maxgap = gap
    def pstamp(k):
        if cfg.stamps == 2:
            for t in ("s_memtime s[68:69]", f"s_add_u32 s70, s71, {256 + 4*k}", "s_waitcnt lgkmcnt(0)", "s_sub_u32 s68, s68, s64",
                      f"v_mov_b32 v{TM[0]}, s68", f"buffer_store_dword v{TM[0]}, off, s[72:75], s70"): P(t)
    pstamp(0)
    dma_kv(pro, 'K', 0, False)
    npre = cfg.npre
    dma_q(pro, 0, sOc, direct=True)
    dma_kv(pro, 'K', 1, False)
    for g in range(1, npre): dma_q(pro, g, sOc, direct=True)
    pstamp(1)
    P("s_barrier", waits=[('K', 0)])
    pstamp(2)
    p2 = []
    read_k(p2, 0, 0); read_k(p2, 0, 1)
    late = [('V', 0), ('K', 2), ('V', 1), ('K', 3), ('V', 2)]
    for kb in range(2):
        for qb in range(NQ):
            if kb == 0:
                if qb + npre < NQ:
                    st = len(p2); dma_q(p2, qb + npre, sOc, direct=True); glue0(p2, st, max(4 * qb - 1, -1))
                read_q(p2, qb, direct=True, after=[x for x in p2 if x.tag == ('Q', qb)])
            qk_chain(p2, 0, kb, qb, cinit=(kb == 1))
            if kb == 0: rowmax(p2, 0, qb)
            if kb == 1 and qb < len(late):
                st = len(p2); w, t = late[qb]; dma_kv(p2, w, t, False); glue0(p2, st, 24 + 4 * qb)
            if kb == 0 or qb < NQ - cfg.ndefer: softmax_quad(p2, 0, kb, qb, raw=(kb == 0))
    b2 = I("s_barrier", pin=True, waits=[('K', 1)]); p2.append(b2)
    read_k(p2, 1, 0, after=[b2])
    pro += schedule(p2, lat_lds=cfg.lat_lds)
    if cfg.stamps == 3:
        for t in ("s_memtime s[78:79]", "s_waitcnt lgkmcnt(0)", "s_sub_u32 s78, s78, s64"): P(t)
    pstamp(3)
    segs['pro'] = pro

    def glue(L, start, gap=None):
        for k, x in enumerate(L[start:]):
            x.glue = k > 0
            if gap is not None: x.mingap = gap; x.maxgap = gap
    def glue_split(L, start, gap, bs, sp):
        seg = L[start:]; del L[start:]
        first = next(k for k, x in enumerate(seg) if x.kind == 'ldsr')
        pre, rd = seg[:first], seg[first:]
        for k in range(0, len(rd), bs):
            st = len(L)
            L.extend((pre if k == 0 else []) + rd[k:k + bs])
            glue(L, st, gap + (k // bs) * sp)
    def fill_m0(L, start):
        seg = L[start:]
        k = 0
        while k + 1 < len(seg):
            if 'm0' in seg[k].wr and seg[k+1].kind == 'dma':
                j = next((x for x in range(k + 2, len(seg)) if seg[x].kind == 'ldsr'), None)
                if j is not None:
                    seg.insert(k + 1, seg.pop(j))
            k += 1
        L[start:] = seg
    def touch(L, lo):
        L.append(I(f"touch {rng('a', FR[lo], 16)}"))
    def drain_rd(L, qb, j, t):
        L.append(I(f"ds_read_b128 {rng('v', t, 4)}, v0 offset:{qb*4096 + 1024*j}"))
    def drain_st(L, qb, j, t, sbase):
        L.append(I(f"s_add_u32 s{sOp}, s{sbase}, {qb*4096}"))
        L.append(I(f"buffer_store_dwordx4 {rng('v', t, 4)}, v{voffK}, s[{sO}:{sO+3}], s{sOp} offen offset:{1024*j}{cfg.o_pol}", tag=('O',)))
    def iteration(i, variant=''):
        L = []
        nt = (i + 1) % 16; nb = (i + 1) % 2; cb = i % 2
        last = (variant == 'L')
        W.clear()
        dq = [g for g in range(NQL) if cfg.drain_it[g] == i]
        qq = [g for g in range(NQ) if cfg.qdma_it[g] == i]
        dq = dq[0] if dq else None; qq = qq[0] if qq else None
        if last:
            for qb in range(NQ - cfg.ndefer, NQ): softmax_quad(L, cb, 1, qb)
            bar = I("s_barrier", pin=True, waits=[('V', i)]); L.append(bar)
            for e in range(4): read_v(L, i, e, after=[bar])
            msum(L, cb, False)
            for qb in cfg.last_order:
                for db in range(8):
                    d = rng(O[qb][0], O[qb][1] + 4 * db, 4)
                    L.append(I(f"{MF} {d}, {rng('a', FR[db], 4)}, {rng('v', S[cb][qb], 4)}, {d}"))
                epi_rinv(L, qb, True)
                for e in range(4): epi_unit(L, qb, e, sOc)
                if qb < NQL: drain(L, qb, sOc, after=W[qb])
            return schedule(L, lat_lds=cfg.lat_lds, rate_scale=cfg.rate_scale)
        G = cfg.pos
        st = len(L); touch(L, 0); read_k(L, nt, 1)
        glue_split(L, st, -1, cfg.kbs, cfg.ksp)
        if dq is not None:
            st = len(L)
            for j in range(3): drain_rd(L, dq, j, DT[j])
            glue(L, st, G['drd'])
        for qb in range(NQ - cfg.ndefer, NQ): softmax_quad(L, cb, 1, qb)
        if qq is not None and qq < NQL and cfg.qswz:
            XT = [TM[0], TM[1], TA]
            for j in range(1, 4): L.append(I(f"v_xor_b32 v{XT[j-1]}, {64*j}, v{voffK}"))
        n = 0
        for kb in range(2):
            for qb in range(NQ):
                raw = (i == 15 and kb == 0)
                qk_chain(L, nb, kb, qb, cinit=not raw); n += 4
                if i == 15 and kb == 0: rowmax(L, nb, qb)
                if kb == 0 or qb < NQ - cfg.ndefer: softmax_quad(L, nb, kb, qb, raw=raw)
                if i == 14 and kb == 1: read_q(L, qb, mg=25 + 4 * qb + 10 + 4 * qb)
                if n == cfg.bar_pos:
                    bar = I("s_barrier", pin=True, waits=[('V', i), ('K', (i + 2) % 16)]); L.append(bar)
                    for which, t, g0 in (('K', i + 4, G['dk']), ('V', i + 3, G['dv'])):
                        st = len(L); dma_kv(L, which, t % 16, t >= 16, after=[bar])
                        if cfg.dma_pair: glue(L, st, g0)
                        else:
                            tail = L[st + 3:]; del L[st + 3:]
                            glue(L, st, g0); st = len(L); L.extend(tail); glue(L, st, g0 + cfg.dma_sp)
                    if qq is not None:
                        st = len(L)
                        ntq = ' nt' if cfg.nt_q else ''
                        if qq < NQL: L.append(I(f"s_add_u32 m0, s{sQw}, {qq*4096}"))
                        L.append(I(f"s_add_u32 s{sT2}, s{sQn}, {qq*4096}"))
                        for j in range(4):
                            if qq < NQL:
                                vo = XT[j-1] if (j and cfg.qswz) else voffK
                                L.append(I(f"buffer_load_dwordx4 v{vo}, s[{sQ}:{sQ+3}], s{sT2} offen offset:{1024*j}{ntq} lds", tag=('Q', qq)))
                            else:
                                L.append(I(f"buffer_load_dwordx4 {rng('a', QX[qq]+4*j, 4)}, v{vOst}, s[{sQ}:{sQ+3}], s{sT2} offen offset:{64*j}{ntq}"))
                        glue(L, st, G['dq'])
            if kb == 0:
                st = len(L); touch(L, 4)
                if dq is not None: drain_st(L, dq, 0, DT[0], sOb)
                read_v(L, i, 0, after=[bar]); glue_split(L, st, 24, cfg.vbs, cfg.vsp)
                st = len(L)
                if dq is not None: drain_st(L, dq, 1, DT[1], sOb)
                read_v(L, i, 1, after=[bar])
                if dq is not None: drain_rd(L, dq, 3, DT[0])
                glue_split(L, st, G['v1'], cfg.vbs, cfg.vsp)
        if i == 0 and variant != 'F':
            epilogue(L, range(cfg.epi_e15, 4), sOb, False)
        st = len(L); touch(L, 0)
        if dq is not None: drain_st(L, dq, 2, DT[2], sOb)
        read_v(L, i, 2, after=[bar]); glue_split(L, st, 48, cfg.vbs, cfg.vsp)
        st = len(L)
        if dq is not None: drain_st(L, dq, 3, DT[0], sOb)
        read_v(L, i, 3, after=[bar]); glue_split(L, st, G['v3'], cfg.vbs, cfg.vsp)
        msum(L, cb, i == 0)
        for db in range(8):
            pv_db(L, cb, db, i == 0)
            if db == 3:
                st = len(L); touch(L, 4)
                read_k(L, (i + 2) % 16, 0, after=[bar])
                glue_split(L, st, 48 + 6 + 24, cfg.kbs, cfg.ksp)
        if i == 15:
            epilogue(L, range(0, cfg.epi_e15), sOc, True)
        return schedule(L, lat_lds=cfg.lat_lds, rate_scale=cfg.rate_scale)

    _iteration = iteration
    def stamp(slot_expr):
        return [I("s_memtime s[68:69]")] + [I(t) for t in slot_expr] + [I("s_waitcnt lgkmcnt(0)"), I("s_sub_u32 s68, s68, s64"),
                I(f"v_mov_b32 v{TM[0]}, s68"), I(f"buffer_store_dword v{TM[0]}, off, s[72:75], s70")]
    if cfg.stamps == 2:
        def iteration(i, variant=''):
            return stamp([f"s_lshl_b32 s70, s{sBlk}, 6", f"s_add_u32 s70, s70, s71", f"s_add_u32 s70, s70, {4*i}"]) + _iteration(i, variant)
    segs['it0F'] = iteration(0, 'F') + [I("s_branch L_it1")]
    for i in range(16):
        segs[f'it{i}'] = iteration(i)
    segs['it14'] += [I(f"s_cmp_eq_u32 s{sBlk}, 3"), I("s_cbranch_scc1 L_it15L")]
    adv = [f"s_mov_b32 s{sOb}, s{sOc}", f"s_mov_b32 s{sOc}, s{sQn}", f"s_mov_b32 s{sKVc}, s{sKVn}",
           f"s_add_u32 s{sBlk}, s{sBlk}, 1", f"s_lshl_b32 s{sBit}, s{sBit}, 1",
           f"s_add_u32 s{sKVn}, s{sKVn}, {16 << 17}", f"s_add_u32 s{sQn}, s{sQn}, {16*768*256}",
           f"s_cmp_eq_u32 s{sBlk}, 3",
           f"s_cselect_b32 s{sKVn}, 0x20000000, s{sKVn}", f"s_cselect_b32 s{sQn}, 0x20000000, s{sQn}",
           "s_branch L_it0"]
    segs['it15'] += [I(t) for t in adv]
    segs['it15L'] = iteration(15, 'L')

    path = ['pro', 'it0F'] + [f'it{i}' for i in range(1, 16)] + [f'it{i}' for i in range(16)] + \
           [f'it{i}' for i in range(15)] + ['it15L']
    st = WaitState(); reqs = {}
    for name in path:
        r = compute_waits(segs[name], st)
        reqs[name] = merge_req(reqs.get(name, {}), r)
    for name in reqs: segs[name] = insert_waits(segs[name], reqs[name])
    nn = 0
    for rep in range(2):
        for a, b in zip([None] + path[:-1], path):
            segs[b], k = fix_hazards(segs[b], history=segs[a][-30:] if a else ()); nn += k
    full = sum((segs[n] for n in path), [])
    bad = check_waits(full, WaitState()); assert not bad, bad[:5]
    bad = check_hazards(full); assert not bad, bad[:5]
    cnt = defaultdict(int)
    for i in range(16):
        for c in segs[f'it{i}']: cnt[c.kind] += 1
    print("per-block counts", dict(cnt), "nops inserted", nn, file=sys.stderr)

    out = [HEADER]
    T = lambda seg: [c.text for c in segs[seg] if c.kind != 'touch']
    out += T('pro') + T('it0F')
    out += [".p2align 6", "L_it0:"] + T('it0') + ["L_it1:"]
    for i in range(1, 16): out += [f"; ---- iteration {i}"] + T(f'it{i}')
    out += ["L_it15L:"] + T('it15L')
    fin = []
    if getattr(cfg, 'diag', None):
        fin += ["s_mov_b32 s50, 48", "L_diag:"]
        for j in range(32):
            if cfg.diag == 'nop': fin += ["s_nop 3"]
            elif cfg.diag == 'm16': fin += [f"{MF} v[{32+4*(j%16)}:{35+4*(j%16)}], a[{4*(j%8)}:{4*(j%8)+3}], a[{32+4*(j%24)}:{35+4*(j%24)}], v[{32+4*(j%16)}:{35+4*(j%16)}]"]
            elif cfg.diag == 'm32' and j % 2 == 0: fin += [f"v_mfma_f32_32x32x16_bf16 v[{32+16*((j//2)%4)}:{47+16*((j//2)%4)}], a[{4*(j%8)}:{4*(j%8)+3}], a[{32+4*(j%24)}:{35+4*(j%24)}], v[{32+16*((j//2)%4)}:{47+16*((j//2)%4)}]"]
        fin += ["s_sub_u32 s50, s50, 1", "s_cmp_lg_u32 s50, 0", "s_cbranch_scc1 L_diag", "s_nop 15"]
    if cfg.stamps: fin += ["s_waitcnt vmcnt(0) lgkmcnt(0)"]
    if cfg.stamps:
        fin += ["s_memtime s[68:69]", "s_memrealtime s[70:71]", "s_waitcnt lgkmcnt(0)",
                "s_sub_u32 s68, s68, s64", "s_sub_u32 s70, s70, s66",
                f"s_lshl_b32 s3, s{sWave}, 4", "s_lshl_b32 s71, s2, 8", "s_add_u32 s3, s3, s71"] + \
               (["s_mul_i32 s3, s2, 193", "s_lshr_b32 s71, s3, 14", "s_mul_i32 s3, s71, 85", "s_sub_u32 s3, s2, s3", f"s_or_b32 s3, s3, s{sWave}",
                 "s_lshl_b32 s3, s3, 8", "s_lshl_b32 s71, s71, 4", "s_add_u32 s3, s3, s71"] if cfg.stamps == 3 else []) + \
               ["v_mov_b32 v36, s68", "v_mov_b32 v37, s70", "v_mov_b32 v38, s66", f"v_mov_b32 v39, s{78 if cfg.stamps == 3 else sFlag}",
                "buffer_store_dwordx4 v[36:39], off, s[72:75], s3", "s_waitcnt vmcnt(0)"]
    out += fin
    out += [f"s_cmp_lg_u32 s{sFlag}, 0", "s_cbranch_scc1 L_redo", "L_end:", "s_endpgm", "L_main_end:"]
    def lin(L):
        st = WaitState()
        L = insert_waits(L, compute_waits(L, st))
        L, _ = fix_hazards(L)
        return [c.text for c in L if c.kind != 'touch'] + ["s_waitcnt vmcnt(0) lgkmcnt(0)", "s_nop 15"]
    RB = 40960
    R = []
    A = lambda t, **k: R.append(I(t, **k))
    assert KS + VS <= NQL * 4096
    A("s_waitcnt vmcnt(0) lgkmcnt(0)")
    A(f"s_mov_b32 s{sRb}, s{sQw}")
    A(f"v_add_u32 v{vKrd}, s{sRb}, v{vKrd}")
    A(f"s_add_u32 s{sT}, s{sRb}, {KS - VB0 + (1 << 32) if KS < VB0 else KS - VB0}")
    for e in range(4): A(f"v_add_u32 v{vVrd[e]}, s{sT}, v{vVrd[e]}")
    out += ["s_nop 15", "L_redo:"] + lin(R)
    out += ["L_redo_blk:", f"s_and_b32 s{sT}, s{sFlag}, 1", "s_cbranch_scc0 L_redo_next"]
    def rdma(L, which):
        srd, voff, base, PIT = (sK, voffK, 0, KP) if which == 'K' else (sV, voffV, KS, VP)
        for a in range(8):
            L.append(I(f"s_add_u32 m0, s{sRb}, {base + a*PIT}"))
            L.append(I(f"s_add_u32 s{sT}, s{sRk}, {a*1024}"))
            L.append(I(f"buffer_load_dwordx4 v{voff}, s[{srd}:{srd+3}], s{sT} offen lds", tag='R'))
    def rread_k(L):
        for f in range(8):
            L.append(I(f"ds_read_b128 {rng('a', FR[f], 4)}, v{vKrd} offset:{(f//4)*4*KP + 64*(f%4)}", waits=['R'] if f == 0 else None))
    MX = [SA[1][0] + q for q in range(NQ)]
    R = []
    for qb in range(NQ):
        A(f"s_add_u32 s{sT2}, s{sO0}, {qb*4096}")
        for j in range(4): A(f"buffer_load_dwordx4 {rng('a', Q[qb]+4*j, 4)}, v{vOst}, s[{sQ}:{sQ+3}], s{sT2} offen offset:{64*j}")
        A(f"v_mov_b32 v{MX[qb]}, 0xff800000")
        f, b = O[qb]
        for r in range(32): A(f"v_mov_b32 v{b+r}, 0" if f == 'v' else f"v_accvgpr_write_b32 a{b+r}, 0")
        for r in range(4): A(f"v_accvgpr_write_b32 a{LS[qb]+r}, 0")
    A(f"s_mov_b32 s{sRk}, s{sKV0}"); A(f"s_mov_b32 s{sRt}, 16")
    out += lin(R) + ["L_redo_p1:"]
    R = []
    rdma(R, 'K'); rread_k(R)
    for kb in range(2):
        for qb in range(NQ):
            qk_chain(R, 0, kb, qb, cinit=False)
    for qb in range(NQ):
        for kb in range(2):
            b = SQ(0, kb, qb)
            for r in range(0, 4, 2): A(f"v_max3_f32 v{MX[qb]}, v{MX[qb]}, v{b+r}, v{b+r+1}")
    A(f"s_add_u32 s{sRk}, s{sRk}, 8192"); A(f"s_sub_u32 s{sRt}, s{sRt}, 1")
    out += lin(R) + [f"s_cmp_lg_u32 s{sRt}, 0", "s_cbranch_scc1 L_redo_p1"]
    R = []
    for qb in range(NQ):
        t, u = MX[qb], TM[1]
        for sw in ("v_permlane32_swap_b32", "v_permlane16_swap_b32"):
            A(f"v_mov_b32 v{u}, v{t}"); A(f"{sw} v{t}, v{u}"); A(f"v_max_f32 v{t}, v{t}, v{u}")
        for r in range(4): A(f"v_sub_f32 v{NEGM[qb]+r}, 0, v{t}")
    A(f"s_mov_b32 s{sRk}, s{sKV0}"); A(f"s_mov_b32 s{sRt}, 16")
    out += lin(R) + ["L_redo_p2:"]
    R = []
    rdma(R, 'K'); rdma(R, 'V'); rread_k(R)
    for kb in range(2):
        for qb in range(NQ):
            qk_chain(R, 0, kb, qb)
    for kb in range(2):
        for qb in range(NQ): softmax_quad(R, 0, kb, qb)
    for db in range(8):
        for u in range(2):
            A(f"ds_read_b64_tr_b16 {rng('a', FR[db] + 2*u, 2)}, v{vVrd[db//2]} offset:{u*4*VP + 8*(db%2)}")
    msum(R, 0, False)
    for db in range(8): pv_db(R, 0, db, False)
    A(f"s_add_u32 s{sRk}, s{sRk}, 8192"); A(f"s_sub_u32 s{sRt}, s{sRt}, 1")
    out += lin(R) + [f"s_cmp_lg_u32 s{sRt}, 0", "s_cbranch_scc1 L_redo_p2"]
    R = []
    for qb in range(NQ):
        epi_rinv(R, qb, False)
        for e in range(4): epi_unit(R, qb, e, sO0, direct=True)
    out += lin(R)
    out += ["L_redo_next:", f"s_add_u32 s{sKV0}, s{sKV0}, {16 << 17}", f"s_add_u32 s{sO0}, s{sO0}, {16*768*256}",
            f"s_lshr_b32 s{sFlag}, s{sFlag}, 1", f"s_cmp_lg_u32 s{sFlag}, 0", "s_cbranch_scc1 L_redo_blk", "s_endpgm", KD]
    return "\n".join(out) + "\n"

if __name__ == "__main__":
    cfg = Cfg()
    for a in sys.argv[2:]:
        k, v = a.split('='); setattr(cfg, k, eval(v))
    print(build(cfg), file=open(sys.argv[1], 'w'), end='')
```

```python
import re
from collections import defaultdict

REG_RE = re.compile(r'\b([vas])\[(\d+):(\d+)\]|\b([vas])(\d+)\b|\b(vcc|m0|exec|scc)\b')
TRANS = ('v_exp_f32', 'v_rcp_f32', 'v_log_f32', 'v_rsq_f32', 'v_sqrt_f32')

def regs_of(tok):
    out = []
    for m in REG_RE.finditer(tok):
        if m.group(1):
            out += [f"{m.group(1)}{i}" for i in range(int(m.group(2)), int(m.group(3)) + 1)]
        elif m.group(4):
            out.append(f"{m.group(4)}{m.group(5)}")
        else:
            out.append(m.group(6))
    return out

def split_ops(s):
    ops, depth, cur = [], 0, ''
    for ch in s:
        if ch == '[': depth += 1
        if ch == ']': depth -= 1
        if ch == ',' and depth == 0:
            ops.append(cur.strip()); cur = ''
        else:
            cur += ch
    if cur.strip(): ops.append(cur.strip())
    return ops

class I:
    __slots__ = ('text', 'mn', 'kind', 'rd', 'wr', 'cost', 'tag', 'waits', 'passes', 'srcc', 'ab',
                 'after', 'idx', 'pin', 'prio', 'preds', 'succs', 'asap', 'alap', 'gap', 'note', 'lat', 'mingap', 'maxgap', 'grp', 'glue')
    def __init__(self, text, tag=None, waits=None, after=(), pin=False, cost=None, note=None, mingap=None, maxgap=None, grp=None, glue=False):
        self.text = text
        self.tag = tag
        self.waits = waits
        self.after = list(after)
        self.pin = pin
        self.note = note
        self.mingap = mingap
        self.maxgap = maxgap
        self.grp = grp
        self.glue = glue
        self.lat = None
        parts = text.split(None, 1)
        mn = parts[0]
        self.mn = mn
        ops = split_ops(parts[1]) if len(parts) > 1 else []
        rd, wr = [], []
        self.passes = 0; self.srcc = []; self.ab = []
        if mn.endswith(':'):
            self.kind = 'label'
        elif mn == 'touch':
            self.kind = 'touch'
            rd = sum((regs_of(o) for o in ops), [])
        elif mn.startswith('v_mfma'):
            self.kind = 'mfma'
            self.passes = 4 if '16x16x32' in mn else 8
            wr = regs_of(ops[0]); self.ab = regs_of(ops[1]) + regs_of(ops[2]); self.srcc = regs_of(ops[3])
            rd = self.ab + self.srcc
        elif mn.startswith('v_cmp'):
            self.kind = 'valu'
            wr = regs_of(ops[0]); rd = sum((regs_of(o) for o in ops[1:]), [])
        elif mn.startswith('v_permlane') and 'swap' in mn:
            self.kind = 'valu'
            wr = regs_of(ops[0]) + regs_of(ops[1]); rd = list(wr)
        elif mn.startswith('v_'):
            self.kind = 'trans' if mn.replace('_e32', '').replace('_e64', '') in TRANS else 'valu'
            wr = regs_of(ops[0]); rd = sum((regs_of(o) for o in ops[1:]), [])
            if mn.startswith(('v_fmac', 'v_dot2c')): rd += wr
            if mn.startswith(('v_add_co', 'v_sub_co', 'v_addc_co')):
                wr += regs_of(ops[1]); rd = sum((regs_of(o) for o in ops[2:]), [])
        elif mn.startswith('ds_read'):
            self.kind = 'ldsr'
            wr = regs_of(ops[0]); rd = regs_of(ops[1])
        elif mn.startswith('ds_write'):
            self.kind = 'ldsw'
            rd = sum((regs_of(o) for o in ops), [])
        elif mn.startswith(('buffer_load', 'global_load')):
            if re.search(r'\blds\b', text) or 'load_lds' in mn:
                self.kind = 'dma'
                rd = sum((regs_of(o) for o in ops), []) + ['m0']
            else:
                self.kind = 'vload'
                wr = regs_of(ops[0]); rd = sum((regs_of(o) for o in ops[1:]), [])
        elif mn.startswith(('buffer_store', 'global_store')):
            self.kind = 'vstore'
            rd = sum((regs_of(o) for o in ops), [])
        elif mn == 's_waitcnt':
            self.kind = 'wait'
        elif mn == 's_barrier':
            self.kind = 'barrier'
        elif mn == 's_nop':
            self.kind = 'nop'
        elif mn.startswith(('s_cbranch', 's_branch', 's_endpgm')):
            self.kind = 'branch'
            if 'scc' in mn: rd = ['scc']
            if 'vcc' in mn: rd = ['vcc']
        elif mn.startswith(('s_load', 's_memtime', 's_memrealtime')):
            self.kind = 'smem'
            wr = regs_of(ops[0]); rd = sum((regs_of(o) for o in ops[1:]), [])
        elif mn.startswith('s_cmp'):
            self.kind = 'salu'
            wr = ['scc']; rd = sum((regs_of(o) for o in ops), [])
        elif mn.startswith('s_getpc'):
            self.kind = 'salu'; wr = regs_of(ops[0])
        elif mn.startswith('s_setprio'):
            self.kind = 'salu'
        elif mn.startswith('s_'):
            self.kind = 'salu'
            wr = regs_of(ops[0]); rd = sum((regs_of(o) for o in ops[1:]), [])
            if mn.startswith(('s_cselect', 's_addc', 's_subb')): rd.append('scc')
            if 'saveexec' in mn: wr.append('exec'); rd.append('exec')
            if mn.startswith(('s_addk', 's_mulk')): rd += regs_of(ops[0])
        else:
            raise ValueError("unknown instruction " + text)
        self.rd = rd; self.wr = wr
        if cost is None:
            cost = {'mfma': 8, 'trans': 8, 'valu': 4, 'ldsr': 12, 'ldsw': 28, 'dma': 24, 'vload': 24, 'vstore': 28,
                    'salu': 4, 'smem': 4, 'wait': 4, 'barrier': 4, 'nop': 4, 'branch': 4, 'label': 0, 'touch': 0}[self.kind]
        self.cost = cost
    def __repr__(self): return self.text

def is_valu(i): return i.kind in ('valu', 'trans')

def required_ws(p, c):
    need = 0
    pw = set(p.wr)
    if is_valu(p):
        vw = {r for r in pw if r[0] in 'va' and r not in ('vcc',)}
        sw = {r for r in pw if r[0] == 's' or r == 'vcc'}
        if c.kind == 'mfma' and vw & set(c.rd): need = max(need, 2)
        if c.mn.startswith('v_permlane') and vw & set(c.rd): need = max(need, 2)
        if c.mn.startswith(('v_readlane', 'v_readfirstlane')) and vw & set(c.rd): need = max(need, 1)
        if 'dpp' in c.text or 'row_' in c.text or 'quad_perm' in c.text:
            if vw & set(c.rd): need = max(need, 2)
        if p.kind == 'trans' and is_valu(c) and c.kind != 'trans' and vw & set(c.rd): need = max(need, 1)
        if ('sdwa' in p.text and 'dst_sel:DWORD' not in p.text) and is_valu(c) and vw & (set(c.rd) | set(c.wr)): need = max(need, 1)
        if sw:
            if is_valu(c) and sw & set(c.rd): need = max(need, 2)
            if c.kind in ('dma', 'vload', 'vstore') and sw & set(c.rd): need = max(need, 5)
            if c.kind == 'mfma' and sw & set(c.rd): need = max(need, 2)
        if 'exec' in pw and (c.kind == 'mfma'): need = max(need, 4)
    if p.kind == 'mfma':
        n = p.passes
        far = {4: 8, 8: 12}[n]
        if c.kind == 'mfma':
            if pw & set(c.ab): need = max(need, far)
            if pw & set(c.srcc):
                if list(p.wr) == list(c.srcc) and p.passes == c.passes: pass
                else: need = max(need, {4: 6, 8: 10}[n])
            elif pw & set(c.wr):
                need = max(need, {4: 6, 8: 10}[n])
        elif is_valu(c):
            if pw & (set(c.rd) | set(c.wr)): need = max(need, far)
            if set(p.srcc) & set(c.wr): need = max(need, {4: 3, 8: 7}[n])
        elif c.kind in ('ldsr', 'ldsw', 'dma', 'vload', 'vstore'):
            if pw & (set(c.rd) | set(c.wr)): need = max(need, far)
    if p.kind == 'salu' and 'm0' in pw and c.kind == 'dma': need = max(need, 1)
    if p.kind == 'vstore' and ('x4' in p.mn or 'x3' in p.mn):
        data = set(regs_of(split_ops(p.text.split(None, 1)[1])[0]))
        if data & set(c.wr): need = max(need, 2 if is_valu(c) else 1)
    return need

def ws_of(i):
    if i.kind in ('label', 'touch'): return 0
    if i.kind == 'nop': return int(i.text.split()[1]) + 1
    return 1

def fix_hazards(seq, history=()):
    out = list(history)
    nh = len(out)
    nins = 0
    for c in seq:
        if c.kind in ('label', 'nop', 'wait', 'touch'):
            out.append(c); continue
        dist = 0; pad = 0
        for p in reversed(out[-40:]):
            if dist >= 20: break
            need = required_ws(p, c)
            if need > dist: pad = max(pad, need - dist)
            dist += ws_of(p)
        while pad > 0:
            k = min(pad, 16)
            out.append(I(f"s_nop {k-1}")); pad -= k; nins += 1
        out.append(c)
    return out[nh:], nins

def check_hazards(seq):
    bad = []
    for n, c in enumerate(seq):
        if c.kind in ('label', 'nop', 'wait', 'touch'): continue
        dist = 0
        for p in reversed(seq[max(0, n-40):n]):
            if dist >= 20: break
            need = required_ws(p, c)
            if need > dist: bad.append((p.text, c.text, need, dist))
            dist += ws_of(p)
    return bad

class WaitState:
    def __init__(self):
        self.lds = []
        self.vm = []
    def copy(self):
        w = WaitState(); w.lds = list(self.lds); w.vm = list(self.vm); return w

def needed_waits(c, st):
    lg = None; vm = None
    touched = set(c.rd) | set(c.wr)
    for k, op in enumerate(st.lds):
        if op.kind == 'ldsr' and set(op.wr) & touched:
            k2 = k
            if op.grp is not None:
                for j in range(k, len(st.lds)):
                    if st.lds[j].grp == op.grp: k2 = j
            n = len(st.lds) - 1 - k2
            lg = n if lg is None else min(lg, n)
        if op.kind == 'smem' and set(op.wr) & touched:
            lg = 0
    for k, op in enumerate(st.vm):
        hit = False
        if op.kind == 'vload' and set(op.wr) & touched: hit = True
        if c.waits and op.tag is not None and op.tag in c.waits: hit = True
        if hit:
            n = len(st.vm) - 1 - k
            vm = n if vm is None else min(vm, n)
    if c.waits and 'LDSALL' in c.waits and st.lds: lg = 0
    if lg is not None and any(o.kind == 'smem' for o in st.lds): lg = 0
    return lg, vm

def apply_wait(st, lg, vm):
    if lg is not None:
        st.lds = st.lds[len(st.lds) - lg:] if lg > 0 else []
    if vm is not None:
        st.vm = st.vm[len(st.vm) - vm:] if vm > 0 else []

WAIT_RE_L = re.compile(r'lgkmcnt\((\d+)\)'); WAIT_RE_V = re.compile(r'vmcnt\((\d+)\)')
def step_state(st, c):
    if c.kind == 'wait':
        ml = WAIT_RE_L.search(c.text); mv = WAIT_RE_V.search(c.text)
        lg = int(ml.group(1)) if ml else None; vm = int(mv.group(1)) if mv else None
        if lg is not None and lg >= len(st.lds): lg = None
        if vm is not None and vm >= len(st.vm): vm = None
        apply_wait(st, lg, vm)
    elif c.kind in ('ldsr', 'ldsw', 'smem'):
        st.lds.append(c)
    elif c.kind in ('dma', 'vload', 'vstore'):
        st.vm.append(c)

def compute_waits(seq, st):
    req = {}
    for n, c in enumerate(seq):
        if c.kind not in ('wait', 'label', 'nop'):
            lg, vm = needed_waits(c, st)
            if lg is not None or vm is not None:
                if lg is not None: lg = min(lg, 15)
                if vm is not None: vm = min(vm, 63)
                req[n] = (lg, vm)
                apply_wait(st, lg, vm)
        step_state(st, c)
    return req

def merge_req(a, b):
    out = dict(a)
    for k, (lg, vm) in b.items():
        if k in out:
            l0, v0 = out[k]
            lg = l0 if lg is None else (lg if l0 is None else min(lg, l0))
            vm = v0 if vm is None else (vm if v0 is None else min(vm, v0))
        out[k] = (lg, vm)
    return out

def insert_waits(seq, req):
    out = []
    for n, c in enumerate(seq):
        if n in req:
            lg, vm = req[n]
            t = 's_waitcnt'
            if vm is not None: t += f" vmcnt({vm})"
            if lg is not None: t += f" lgkmcnt({lg})"
            out.append(I(t))
        out.append(c)
    return out

def check_waits(seq, st):
    bad = []
    for n, c in enumerate(seq):
        if c.kind not in ('wait', 'label', 'nop'):
            lg, vm = needed_waits(c, st)
            if lg is not None or vm is not None: bad.append((n, c.text, lg, vm))
            apply_wait(st, lg, vm)
        step_state(st, c)
    return bad

class Unit:
    def __init__(self, members):
        self.members = members
        f = members[0]
        self.kind = f.kind if all(m.kind == f.kind for m in members) else members[-1].kind
        self.mn = members[-1].mn; self.text = " ; ".join(m.text for m in members)
        self.rd = sum((m.rd for m in members), []); self.wr = sum((m.wr for m in members), [])
        self.after = sum((m.after for m in members), []); self.pin = False
        self.srcc = []; self.ab = []; self.passes = 0; self.lat = f.lat
        mn_ = [m.mingap for m in members if m.mingap is not None]; mx_ = [m.maxgap for m in members if m.maxgap is not None]
        self.mingap = max(mn_) if mn_ else None; self.maxgap = min(mx_) if mx_ else None
        if any(m.kind == 'ldsr' for m in members): self.kind = 'ldsr'
        if all(m.kind == 'ldsr' for m in members): self.cost = 12 + 4 * (len(members) - 1)
        else:
            c = 0; seen = False
            for m in members:
                if m.kind in ('ldsr', 'dma', 'vstore', 'ldsw', 'vload'):
                    c += ({'ldsr': 4, 'dma': 8, 'vstore': 28, 'ldsw': 20, 'vload': 8}[m.kind] if seen else {'ldsr': 12, 'dma': 24, 'vstore': 28, 'ldsw': 28, 'vload': 24}[m.kind])
                    seen = True
                elif m.kind in ('salu', 'wait', 'nop') and not seen: pass
                else: c += m.cost
            self.cost = c
def make_units(prog):
    out = []; umap = {}
    for i in prog:
        if i.glue and out:
            prev = out[-1]
            mem = (prev.members if isinstance(prev, Unit) else [prev]) + [i]
            out[-1] = Unit(mem)
        else:
            out.append(i)
    for u in out:
        if isinstance(u, Unit):
            for m in u.members: umap[id(m)] = u
    for u in out:
        u.after = [umap.get(id(p), p) for p in u.after]
    return out

def schedule(prog, lat_lds=7, lat_mfma_valu=None, rate_scale=1.0, verbose=False, min_rate=None):
    prog = make_units(prog)
    for n, i in enumerate(prog):
        i.idx = n; i.preds = []; i.succs = []
    lastw = {}; readers = defaultdict(list)
    def edge(p, c, lat):
        if p is c: return
        c.preds.append((p, lat)); p.succs.append((c, lat))
    bb = [i for i in prog if i.kind == 'mfma' or i.pin]
    for g, i in enumerate(bb): i.gap = g
    isbb = lambda i: i.kind == 'mfma' or i.pin
    def lat_of(p, c, typ):
        if typ == 'raw':
            if p.kind == 'mfma':
                if c.kind == 'mfma' and list(p.wr) == list(c.srcc) and not (set(p.wr) & set(c.ab)): return 0
                return lat_mfma_valu if lat_mfma_valu is not None else (5 if p.passes == 4 else 4)
            if p.kind == 'ldsr': return lat_lds if True else 0
            if p.kind == 'vload': return p.lat if getattr(p, 'lat', None) else 60
            if is_valu(p) and c.kind == 'mfma': return 1
            return 0
        if typ == 'waw':
            if p.kind == 'mfma' and c.kind != 'mfma': return 5 if p.passes == 4 else 4
            return 0
        if typ == 'war':
            if p.kind == 'mfma' and is_valu(c) and set(p.srcc) & set(c.wr): return 2
            return 0
    lastlds = None; lastvm = None
    for i in prog:
        for r in i.rd:
            if r in lastw: edge(lastw[r], i, lat_of(lastw[r], i, 'raw'))
        for r in i.wr:
            if r in lastw: edge(lastw[r], i, lat_of(lastw[r], i, 'waw'))
            for q in readers[r]: edge(q, i, lat_of(q, i, 'war'))
        for p in i.after: edge(p, i, 0)
        for r in i.rd: readers[r].append(i)
        for r in i.wr:
            lastw[r] = i; readers[r] = []
    nb = len(bb)
    for i in prog:
        if isbb(i): i.asap = i.gap; continue
        a = -1
        for p, lat in i.preds:
            a = max(a, (p.gap if isbb(p) else p.asap) + lat)
        if i.mingap is not None: a = max(a, i.mingap)
        i.asap = min(a, nb - 1)
    for i in reversed(prog):
        if isbb(i): i.alap = i.gap; continue
        a = nb - 1
        for s, lat in i.succs:
            if isbb(s): a = min(a, s.gap - 1 - max(lat - 1, 0) if lat > 0 else s.gap - 1)
            else: a = min(a, s.alap - lat)
        if i.maxgap is not None: a = min(a, i.maxgap)
        i.alap = max(a, i.asap)
    fillers = [i for i in prog if not isbb(i)]
    total = sum(i.cost for i in fillers)
    rate = total / max(nb, 1) * rate_scale
    if min_rate is not None: rate = max(rate, min_rate)
    placed = set(); out = []
    import heapq
    npred = {id(i): sum(1 for p, _ in i.preds if not isbb(p)) for i in fillers}
    readyat = {id(i): max([-1] + [p.gap + lat for p, lat in i.preds if isbb(p)] + ([i.mingap] if i.mingap is not None else [])) for i in fillers}
    avail = [i for i in fillers if npred[id(i)] == 0]
    pinned = lambda i: i.mingap is not None and i.mingap == i.maxgap
    pin_gaps = set(i.mingap for i in fillers if pinned(i))
    remaining = float(sum(i.cost for i in fillers if not pinned(i)))
    floor = 8.0 if any(b.kind == 'mfma' and b.passes == 4 for b in bb) else 24.0
    for g in range(-1, nb):
        if g >= 0:
            out.append(bb[g])
        gaps_left = max(1, sum(1 for x in range(max(g, 0), nb) if x not in pin_gaps and bb[x].kind == 'mfma'))
        target = max(floor, remaining / gaps_left * rate_scale) if g >= 0 else 0
        if g >= 0 and (bb[g].kind != 'mfma' or g in pin_gaps): target = 0
        used = 0.0
        while True:
            cand = [i for i in avail if readyat[id(i)] <= g or i.alap <= g]
            if not cand: break
            cand.sort(key=lambda i: (i.alap, i.idx))
            i = cand[0]
            forced = i.alap <= g or g == nb - 1
            if not forced and out and not isinstance(out[-1], Unit) and not isinstance(i, Unit) and required_ws(out[-1], i) > 0:
                alt = [j for j in cand[1:16] if not isinstance(j, Unit) and required_ws(out[-1], j) == 0]
                if alt: i = alt[0]
                elif used >= floor: break
            if not forced:
                room = target - used
                if room < 2: break
                if i.cost > room + 2 and used > 0:
                    alt = [j for j in cand[1:12] if j.cost <= room + 2]
                    if not alt: break
                    i = alt[0]
            avail.remove(i); out.append(i); i.gap = g; used += i.cost
            if not pinned(i): remaining -= i.cost
            for s, lat in i.succs:
                if not isbb(s):
                    npred[id(s)] -= 1
                    readyat[id(s)] = max(readyat[id(s)], g + lat)
                    if npred[id(s)] == 0: avail.append(s)
    assert len(out) == len(prog), (len(out), len(prog))
    pos = {id(i): n for n, i in enumerate(out)}
    for i in prog:
        for p, _ in i.preds:
            assert pos[id(p)] < pos[id(i)], ("dep violated", p.text, i.text)
    flat = []
    for i in out:
        flat += i.members if isinstance(i, Unit) else [i]
    return flat
```

```python
import sys, struct
from fw import *

HEADER = """; Kernarg layout for this problem (48 bytes, ptrs only, base s[0:1]):
; @launch grid=(256,1,1) block=(256,1,1) lds=163840
.amdgcn_target "amdgcn-amd-amdhsa--gfx950"
.text
.globl standalone__mha_softmax__near_ridge_kernel
.p2align 8
.type standalone__mha_softmax__near_ridge_kernel,@function
standalone__mha_softmax__near_ridge_kernel:"""

KD = """.section .rodata,"a"
.p2align 6
.amdhsa_kernel standalone__mha_softmax__near_ridge_kernel
  .amdhsa_next_free_vgpr 512
  .amdhsa_next_free_sgpr 102
  .amdhsa_accum_offset 256
  .amdhsa_group_segment_fixed_size 0
  .amdhsa_kernarg_size 48
  .amdhsa_user_sgpr_count 2
  .amdhsa_user_sgpr_kernarg_segment_ptr 1
  .amdhsa_system_sgpr_workgroup_id_x 1
.end_amdhsa_kernel"""

def rng(f, b, n): return f"{f}[{b}:{b+n-1}]"
def f32(x): return "0x%08x" % struct.unpack("<I", struct.pack("<f", x))[0]
MF = "v_mfma_f32_16x16x32_bf16"

class Cfg:
    NQ = 6
    NKS = 4; NVS = 4
    NQL = 5
    KP = 1088; VP = 1032
    bar_pos = 12
    lat_lds = 8
    stamps = False
    thr = 2.0 ** 60
    rate_scale = 1.0
    ndefer = 2
    qdma_it = (3, 5, 7, 9, 11, 12)
    drain_it = (1, 2, 4, 6, 8)
    nt_q = True
    o_pol = ''
    nt_kv = True
    codepf = True
    qswz = True
    npre = 6
    dma_pair = False
    bar_late = False
    posl = dict(dk=82, dv=90)
    delta = 0.0
    exp_enc = ''
    last_order = (5, 4, 0, 1, 2, 3)
    kbs = 2; ksp = 3; vbs = 2; vsp = 3
    dma_sp = 3
    pos = dict(drd=6, dk=14, dv=36, dq=64, v1=30, v3=56)
    epi_e15 = 1

def build(cfg):
    NQ = cfg.NQ; KP = cfg.KP; VP = cfg.VP
    KS = 8 * KP; VS = 8 * VP
    KB0 = 0; VB0 = cfg.NKS * KS; QB0 = VB0 + cfg.NVS * VS
    QB0 = (QB0 + 15) // 16 * 16
    NQL = cfg.NQL
    assert QB0 + 4 * NQL * 4096 <= 163840, QB0
    vKrd, vV0, voffK, voffV, vQrd, vOst = 1, 2, 6, 7, 8, 9
    vVrd = [2, 3, 4, 5]
    RINV = [10, 11]
    TM = [12, 13]
    TP = [20, 24]
    TA = 28
    QA = [TA + s for s in range(4)]
    SA = [[32 + (b * NQ + q) * 4 for q in range(NQ)] for b in range(2)]
    SB = [80 + 4 * q for q in range(NQ)]
    NEGM = [104 + 4 * q for q in range(NQ)]
    S = SA
    def SQ(buf, kb, qb): return SA[buf][qb] if kb == 0 else SB[qb]
    NOV = 4
    O = [('v', 128 + 32 * q) for q in range(NOV)]
    FR = [4 * i for i in range(8)]
    Q = [32 + 16 * q for q in range(NQ)]
    ONES = 128
    LS = [132 + 4 * q for q in range(NQ)]
    O += [('a', 156 + 32 * q) for q in range(NQ - NOV)]
    QX = {q: 220 + 16 * (q - NQL) for q in range(NQL, NQ)}
    sQ, sK, sV, sO = 12, 16, 20, 24
    sWave = 30; sC = 31; sKVc = 32; sKVn = 33; sQn = 34; sOc = 35; sOp = 36; sKw = 37; sVw = 38; sQw = 39
    sT = 40; sT2 = 41; sBlk = 42; sFlag = 43; sThr = 44; sOb = 45; sOn = 46; sBit = 47; sKV0 = 52; sO0 = 53; sRt = 54; sRb = 55; sRk = 56; sDel = 57
    c_scale = (128 ** -0.5) * 1.4426950408889634

    segs = {}
    NTKV = ' nt' if cfg.nt_kv else ''
    pro = []
    P = lambda t, **k: (pro.append(I(t, **k)), pro[-1])[1]
    P("s_cmp_ge_u32 s2, 256"); P("s_cbranch_scc1 L_end")
    P("s_load_dwordx4 s[4:7], s[0:1], 0"); P("s_load_dwordx4 s[8:11], s[0:1], 16")
    if cfg.stamps:
        P(f"s_load_dwordx2 s[60:61], s[0:1], {32 if cfg.stamps == 3 else 40}"); P("s_memtime s[64:65]"); P("s_memrealtime s[66:67]")
    P("v_and_b32 v32, 63, v0")
    P("v_lshrrev_b32 v33, 6, v0")
    P("v_lshrrev_b32 v34, 4, v32")
    P("v_readfirstlane_b32 s30, v33")
    P("v_and_b32 v35, 15, v32")
    if cfg.codepf:
        P("s_getpc_b64 s[48:49]")
        P("L_pc:")
        P("s_bfe_u32 s50, s2, 0x20003"); P("s_mul_i32 s50, s50, 12288")
        P("v_mul_u32_u24 v40, 3072, v33"); P("v_lshl_add_u32 v40, v32, 4, v40"); P("v_add_u32 v40, s50, v40")
        for j in range(3):
            P(f"v_add_u32 v41, {1024*j}, v40"); P("v_min_u32 v41, (L_main_end-L_pc-16), v41")
            P(f"global_load_dwordx4 v[{44+4*j}:{47+4*j}], v41, s[48:49]")
    P("v_xor_b32 v36, v35, v34"); P("v_lshlrev_b32 v36, 4, v36"); P(f"v_lshl_add_u32 v{voffK}, v34, 8, v36")
    P("v_lshlrev_b32 v36, 2, v34"); P("v_xor_b32 v36, v35, v36"); P("v_lshlrev_b32 v36, 4, v36"); P(f"v_lshl_add_u32 v{voffV}, v34, 8, v36")
    P("v_lshrrev_b32 v36, 2, v35")
    P("v_and_b32 v37, 3, v35")
    P("v_xor_b32 v38, v37, v34"); P("v_lshlrev_b32 v38, 4, v38"); P("v_lshl_add_u32 v38, v37, 8, v38")
    P(f"v_mul_u32_u24 v39, {KP}, v36"); P(f"v_add_u32 v{vKrd}, v39, v38")
    P("v_lshl_add_u32 v38, v36, 10, v38")
    P(f"v_mul_u32_u24 v39, {NQL*4096}, v33"); P("v_add_u32 v38, v38, v39"); P(f"v_add_u32 v{vQrd}, {QB0}, v38")
    P(f"v_mul_u32_u24 v38, {VP}, v34"); P("v_lshl_add_u32 v38, v36, 8, v38"); P("v_lshl_add_u32 v38, v37, 4, v38")
    P(f"v_add_u32 v38, {VB0}, v38")
    for e in range(4):
        P(f"v_xor_b32 v39, {e}, v36"); P(f"v_lshl_add_u32 v{vVrd[e]}, v39, 6, v38")
    P("v_lshlrev_b32 v38, 4, v34"); P(f"v_lshl_add_u32 v{vOst}, v35, 8, v38")
    P(f"v_mul_u32_u24 v39, {NQL*4096}, v33"); P("v_lshl_add_u32 v39, v32, 4, v39"); P(f"v_add_u32 v0, {QB0}, v39")
    P("v_mov_b32 v38, 0x3f803f80")
    for r in range(4): P(f"v_accvgpr_write_b32 a{ONES+r}, v38")
    P("s_waitcnt lgkmcnt(0)")
    for base, src, n in ((sQ, 4, 0x6000000), (sK, 6, 0x4000000), (sV, 8, 0x4000000), (sO, 10, 0x6000000)):
        P(f"s_mov_b32 s{base}, s{src}"); P(f"s_mov_b32 s{base+1}, s{src+1}")
        P(f"s_mov_b32 s{base+2}, {n}"); P(f"s_mov_b32 s{base+3}, 0x20000")
    if cfg.stamps:
        for t in ("s_mov_b32 s72, s60", "s_mov_b32 s73, s61", f"s_mov_b32 s74, {64 if cfg.stamps == 3 else 0x1000000}", "s_mov_b32 s75, 0x20000",
                  "s_lshl_b32 s71, s2, 2", f"s_add_u32 s71, s71, s{sWave}", "s_lshl_b32 s71, s71, 9", "s_add_u32 s71, s71, 0x100000"): P(t)
    P(f"s_mov_b32 s{sDel}, {f32(cfg.delta / c_scale)}")
    P(f"s_mov_b32 s{sC}, {f32(c_scale)}"); P(f"s_mov_b32 s{sThr}, {f32(cfg.thr)}")
    P("s_and_b32 s4, s2, 7"); P("s_lshl_b32 s4, s4, 6"); P("s_lshr_b32 s5, s2, 4"); P("s_add_u32 s4, s4, s5")
    P("s_bfe_u32 s5, s2, 0x10003")
    P(f"s_lshl_b32 s6, s{sWave}, 11")
    P(f"s_lshl_b32 s{sKV0}, s4, 17"); P(f"s_add_u32 s{sKVc}, s{sKV0}, s6")
    P(f"s_add_u32 s{sKVn}, s{sKVc}, {16 << 17}")
    P("s_mul_i32 s6, s4, 768"); P("s_mul_i32 s7, s5, 384"); P("s_add_u32 s6, s6, s7")
    P(f"s_mul_i32 s7, s{sWave}, 96"); P("s_add_u32 s6, s6, s7"); P(f"s_lshl_b32 s{sOc}, s6, 8")
    P(f"s_mov_b32 s{sOb}, 0x20000000"); P(f"s_mov_b32 s{sO0}, s{sOc}")
    P(f"s_add_u32 s{sQn}, s{sOc}, {16*768*256}")
    P(f"s_mul_i32 s{sKw}, s{sWave}, {2*KP}")
    P(f"s_mul_i32 s{sVw}, s{sWave}, {2*VP}"); P(f"s_add_u32 s{sVw}, s{sVw}, {VB0}")
    P(f"s_mul_i32 s{sQw}, s{sWave}, {NQL*4096}"); P(f"s_add_u32 s{sQw}, s{sQw}, {QB0}")
    P(f"s_mov_b32 s{sBlk}, 0"); P(f"s_mov_b32 s{sFlag}, 0"); P(f"s_mov_b32 s{sBit}, 1")

    def dma_kv(L, which, tile, nxt, after=(), mg=None):
        srd, sw, voff, base, SZ, PIT, NS = ((sK, sKw, voffK, KB0, KS, KP, cfg.NKS) if which == 'K'
                                            else (sV, sVw, voffV, 0, VS, VP, cfg.NVS))
        gt = tile + (16 if nxt else 0)
        slot = slot_of(which, tile, nxt)
        tag = (which, tile)
        a = list(after)
        L.append(I(f"s_add_u32 m0, s{sw}, {base + slot*SZ}", after=a))
        L.append(I(f"s_add_u32 s{sT}, s{sKVn if nxt else sKVc}, {tile*8192}", after=a))
        L.append(I(f"buffer_load_dwordx4 v{voff}, s[{srd}:{srd+3}], s{sT} offen{NTKV} lds", tag=tag, after=a, maxgap=mg))
        L.append(I(f"s_add_u32 m0, s{sw}, {base + slot*SZ + PIT - 1024}", after=a))
        L.append(I(f"buffer_load_dwordx4 v{voff}, s[{srd}:{srd+3}], s{sT} offen offset:1024{NTKV} lds", tag=tag, after=a, maxgap=mg + 2 if mg else None))
    def slot_of(which, tile, nxt=False):
        return tile % (cfg.NKS if which == 'K' else cfg.NVS)
    def dma_q(L, grp, sbase, after=(), direct=False, **kw):
        a = list(after)
        L.append(I(f"s_add_u32 s{sT2}, s{sbase}, {grp*4096}", after=a, **kw))
        if grp >= NQL:
            dst = Q[grp] if direct else QX[grp]
            for j in range(4):
                L.append(I(f"buffer_load_dwordx4 {rng('a', dst+4*j, 4)}, v{vOst}, s[{sQ}:{sQ+3}], s{sT2} offen offset:{64*j}{' nt' if cfg.nt_q else ''}", after=a, **kw))
                L[-1].lat = 1
            return
        L.append(I(f"s_add_u32 m0, s{sQw}, {grp*4096}", after=a, **kw))
        for j in range(4):
            vo = voffK
            if cfg.qswz and j:
                vo = TM[j % 2]
                L.append(I(f"v_xor_b32 v{vo}, {64*j}, v{voffK}", after=a, **kw))
            L.append(I(f"buffer_load_dwordx4 v{vo}, s[{sQ}:{sQ+3}], s{sT2} offen offset:{1024*j}{' nt' if cfg.nt_q else ''} lds", tag=('Q', grp), after=a, **kw))
    gid = [0]
    def read_k(L, tile, kb, after=(), maxgap=None):
        gid[0] += 1
        for s in range(4):
            L.append(I(f"ds_read_b128 {rng('a', FR[4*kb+s], 4)}, v{vKrd} offset:{KB0 + slot_of('K', tile)*KS + kb*4*KP + 64*s}",
                       after=list(after), grp=gid[0], glue=(s > 0), maxgap=maxgap))
    def read_v(L, tile, e, after=()):
        gid[0] += 1
        for o in range(2):
            for u in range(2):
                L.append(I(f"ds_read_b64_tr_b16 {rng('a', FR[2*e+o] + 2*u, 2)}, v{vVrd[e]} offset:{slot_of('V', tile)*VS + u*4*VP + 8*o}",
                           after=list(after), grp=gid[0], glue=(o + u > 0)))
    def read_q(L, qb, direct=False, mg=None, after=()):
        gid[0] += 1
        if qb >= NQL:
            if not direct:
                for r in range(16): L.append(I(f"v_accvgpr_mov_b32 a{Q[qb]+r}, a{QX[qb]+r}", maxgap=mg))
            return
        if cfg.qswz and qb == 0:
            L.append(I(f"v_mbcnt_lo_u32_b32 v{QA[0]}, -1, 0")); L.append(I(f"v_mbcnt_hi_u32_b32 v{QA[0]}, -1, v{QA[0]}"))
            L.append(I(f"v_bfe_u32 v{QA[0]}, v{QA[0]}, 2, 2")); L.append(I(f"v_lshl_add_u32 v{QA[0]}, v{QA[0]}, 6, v{vQrd}"))
            for s in range(1, 4): L.append(I(f"v_xor_b32 v{QA[s]}, {64*s}, v{QA[0]}"))
        for s in range(4):
            ad = f"v{QA[s]} offset:{qb*4096}" if cfg.qswz else f"v{vQrd} offset:{qb*4096 + 64*s}"
            L.append(I(f"ds_read_b128 {rng('a', Q[qb]+4*s, 4)}, {ad}",
                       grp=gid[0], glue=(s > 0), waits=[('Q', qb)] if s == 0 else None, maxgap=mg, after=list(after)))
    def qk_chain(L, buf, kb, qb, cinit=True):
        d = rng('v', SQ(buf, kb, qb), 4)
        c0 = rng('v', NEGM[qb], 4) if cinit else '0'
        for s in range(4):
            L.append(I(f"{MF} {d}, {rng('a', FR[4*kb+s], 4)}, {rng('a', Q[qb]+4*s, 4)}, {d if s else c0}"))
    def softmax_quad(L, buf, kb, qb, raw=False):
        b = SQ(buf, kb, qb); pb = SA[buf][qb] + 2 * kb
        if raw:
            for k in range(4): L.append(I(f"v_add_f32 v{b+k}, v{b+k}, v{NEGM[qb]}"))
        for k in range(4): L.append(I(f"v_mul_f32 v{b+k}, s{sC}, v{b+k}"))
        for k in range(4): L.append(I(f"v_exp_f32{cfg.exp_enc} v{b+k}, v{b+k}"))
        L.append(I(f"v_cvt_pk_bf16_f32 v{pb}, v{b}, v{b+1}"))
        L.append(I(f"v_cvt_pk_bf16_f32 v{pb+1}, v{b+2}, v{b+3}"))
    def rowmax(L, buf, qb):
        b = SA[buf][qb]; t, u = TM
        L.append(I(f"v_max3_f32 v{t}, v{b}, v{b+1}, v{b+2}"))
        L.append(I(f"v_max_f32 v{t}, v{t}, v{b+3}"))
        L.append(I(f"v_mov_b32 v{u}, v{t}"))
        L.append(I(f"v_permlane32_swap_b32 v{t}, v{u}"))
        L.append(I(f"v_max_f32 v{t}, v{t}, v{u}"))
        L.append(I(f"v_mov_b32 v{u}, v{t}"))
        L.append(I(f"v_permlane16_swap_b32 v{t}, v{u}"))
        L.append(I(f"v_max_f32 v{t}, v{t}, v{u}"))
        for r in range(4): L.append(I(f"v_sub_f32 v{NEGM[qb]+r}, s{sDel}, v{t}"))
    def msum(L, buf, first):
        if getattr(cfg, 'whatif', '') == 'nomsum' and not first: return
        for qb in range(NQ):
            d = rng('a', LS[qb], 4)
            L.append(I(f"{MF} {d}, {rng('a', ONES, 4)}, {rng('v', S[buf][qb], 4)}, {'0' if first else d}"))
    def pv_db(L, buf, db, first):
        for qb in range(NQ):
            d = rng(O[qb][0], O[qb][1] + 4 * db, 4)
            L.append(I(f"{MF} {d}, {rng('a', FR[db], 4)}, {rng('v', S[buf][qb], 4)}, {'0' if first else d}"))
    tpi = [0]
    def epi_l(L, sbit_update=True):
        pass
    def epi_unit(L, qb, e, sbase, direct=False):
        f, b = O[qb]; tp = TP[tpi[0] % 2]; tpi[0] += 1
        ri = RINV[qb % 2]
        for o in range(2):
            base = b + 4 * (2 * e + o)
            if f == 'v':
                for r in range(4): L.append(I(f"v_mul_f32 v{base+r}, v{base+r}, v{ri}"))
                src = base
            else:
                for r in range(4): L.append(I(f"v_accvgpr_read_b32 v{TA+r}, a{base+r}"))
                for r in range(4): L.append(I(f"v_mul_f32 v{TA+r}, v{TA+r}, v{ri}"))
                src = TA
            L.append(I(f"v_cvt_pk_bf16_f32 v{tp+2*o}, v{src}, v{src+1}"))
            L.append(I(f"v_cvt_pk_bf16_f32 v{tp+2*o+1}, v{src+2}, v{src+3}"))
        if qb < NQL and not direct:
            L.append(I(f"ds_write_b128 v{vQrd}, {rng('v', tp, 4)} offset:{qb*4096 + 64*e}"))
            W[qb].append(L[-1])
        else:
            L.append(I(f"s_add_u32 s{sOp}, s{sbase}, {qb*4096}"))
            L.append(I(f"buffer_store_dwordx4 {rng('v', tp, 4)}, v{vOst}, s[{sO}:{sO+3}], s{sOp} offen offset:{64*e}{cfg.o_pol}", tag=('O',)))
    W = defaultdict(list)
    DT = [TP[0], TP[1], TA]
    def drain(L, qb, sbase, after=()):
        st = []
        L.append(I(f"s_add_u32 s{sOp}, s{sbase}, {qb*4096}"))
        for j in range(4):
            t = DT[tpi[0] % 3]; tpi[0] += 1
            L.append(I(f"ds_read_b128 {rng('v', t, 4)}, v0 offset:{qb*4096 + 1024*j}", after=list(after)))
            L.append(I(f"buffer_store_dwordx4 {rng('v', t, 4)}, v{voffK}, s[{sO}:{sO+3}], s{sOp} offen offset:{1024*j}{cfg.o_pol}", tag=('O',)))
            st.append(L[-1])
        return st
    def epi_rinv(L, qb, check):
        ri = RINV[qb % 2]
        L.append(I(f"v_accvgpr_read_b32 v{ri}, a{LS[qb]}"))
        if check:
            L.append(I(f"v_cmp_nge_f32 vcc, s{sThr}, v{ri}"))
            L.append(I(f"s_cmp_lg_u64 vcc, 0"))
            L.append(I(f"s_cselect_b32 s{sOn}, s{sBit}, 0", glue=True))
            L.append(I(f"s_or_b32 s{sFlag}, s{sFlag}, s{sOn}"))
        L.append(I(f"v_rcp_f32 v{ri}, v{ri}"))
    def epilogue(L, es, sbase, check):
        for qb in range(NQ):
            epi_rinv(L, qb, check)
            for e in es: epi_unit(L, qb, e, sbase)

    def glue0(L, start, gap):
        for k, x in enumerate(L[start:]):
            x.glue = k > 0; x.mingap = gap; x.maxgap = gap
    def pstamp(k):
        if cfg.stamps == 2:
            for t in ("s_memtime s[68:69]", f"s_add_u32 s70, s71, {256 + 4*k}", "s_waitcnt lgkmcnt(0)", "s_sub_u32 s68, s68, s64",
                      f"v_mov_b32 v{TM[0]}, s68", f"buffer_store_dword v{TM[0]}, off, s[72:75], s70"): P(t)
    pstamp(0)
    dma_kv(pro, 'K', 0, False)
    npre = cfg.npre
    dma_q(pro, 0, sOc, direct=True)
    dma_kv(pro, 'K', 1, False)
    for g in range(1, npre): dma_q(pro, g, sOc, direct=True)
    pstamp(1)
    P("s_barrier", waits=[('K', 0)])
    pstamp(2)
    p2 = []
    read_k(p2, 0, 0); read_k(p2, 0, 1)
    late = [('V', 0), ('K', 2), ('V', 1), ('K', 3), ('V', 2)] + ([('V', 3)] if cfg.bar_late else [])
    for kb in range(2):
        for qb in range(NQ):
            if kb == 0:
                if qb + npre < NQ:
                    st = len(p2); dma_q(p2, qb + npre, sOc, direct=True); glue0(p2, st, max(4 * qb - 1, -1))
                read_q(p2, qb, direct=True, after=[x for x in p2 if x.tag == ('Q', qb)])
            qk_chain(p2, 0, kb, qb, cinit=(kb == 1))
            if kb == 0: rowmax(p2, 0, qb)
            if kb == 1 and qb < len(late):
                st = len(p2); w, t = late[qb]; dma_kv(p2, w, t, False); glue0(p2, st, 24 + 4 * qb)
            if kb == 0 or qb < NQ - cfg.ndefer: softmax_quad(p2, 0, kb, qb, raw=(kb == 0))
    b2 = I("s_barrier", pin=True, waits=[('K', 1)] + ([('V', 0)] if cfg.bar_late else []),
           after=[x for x in p2 if x.tag == ('V', 0)]); p2.append(b2)
    read_k(p2, 1, 0, after=[b2])
    if cfg.bar_late: dma_kv(p2, 'K', 4, False, after=[b2])
    pro += schedule(p2, lat_lds=cfg.lat_lds)
    if cfg.stamps == 3:
        for t in ("s_memtime s[78:79]", "s_waitcnt lgkmcnt(0)", "s_sub_u32 s78, s78, s64"): P(t)
    pstamp(3)
    segs['pro'] = pro

    def glue(L, start, gap=None):
        for k, x in enumerate(L[start:]):
            x.glue = k > 0
            if gap is not None: x.mingap = gap; x.maxgap = gap
    def glue_split(L, start, gap, bs, sp):
        seg = L[start:]; del L[start:]
        first = next(k for k, x in enumerate(seg) if x.kind == 'ldsr')
        pre, rd = seg[:first], seg[first:]
        for k in range(0, len(rd), bs):
            st = len(L)
            L.extend((pre if k == 0 else []) + rd[k:k + bs])
            glue(L, st, gap + (k // bs) * sp)
    def fill_m0(L, start):
        seg = L[start:]
        k = 0
        while k + 1 < len(seg):
            if 'm0' in seg[k].wr and seg[k+1].kind == 'dma':
                j = next((x for x in range(k + 2, len(seg)) if seg[x].kind == 'ldsr'), None)
                if j is not None:
                    seg.insert(k + 1, seg.pop(j))
            k += 1
        L[start:] = seg
    def touch(L, lo):
        L.append(I(f"touch {rng('a', FR[lo], 16)}"))
    def drain_rd(L, qb, j, t):
        L.append(I(f"ds_read_b128 {rng('v', t, 4)}, v0 offset:{qb*4096 + 1024*j}"))
    def drain_st(L, qb, j, t, sbase):
        L.append(I(f"s_add_u32 s{sOp}, s{sbase}, {qb*4096}"))
        L.append(I(f"buffer_store_dwordx4 {rng('v', t, 4)}, v{voffK}, s[{sO}:{sO+3}], s{sOp} offen offset:{1024*j}{cfg.o_pol}", tag=('O',)))
    def iteration(i, variant=''):
        L = []
        nt = (i + 1) % 16; nb = (i + 1) % 2; cb = i % 2
        last = (variant == 'L')
        W.clear()
        dq = [g for g in range(NQL) if cfg.drain_it[g] == i]
        qq = [g for g in range(NQ) if cfg.qdma_it[g] == i]
        dq = dq[0] if dq else None; qq = qq[0] if qq else None
        if last:
            for qb in range(NQ - cfg.ndefer, NQ): softmax_quad(L, cb, 1, qb)
            if cfg.bar_late:
                for e in range(4): read_v(L, i, e)
            else:
                bar = I("s_barrier", pin=True, waits=[('V', i)]); L.append(bar)
                for e in range(4): read_v(L, i, e, after=[bar])
            msum(L, cb, False)
            for qb in cfg.last_order:
                for db in range(8):
                    d = rng(O[qb][0], O[qb][1] + 4 * db, 4)
                    L.append(I(f"{MF} {d}, {rng('a', FR[db], 4)}, {rng('v', S[cb][qb], 4)}, {d}"))
                epi_rinv(L, qb, True)
                for e in range(4): epi_unit(L, qb, e, sOc)
                if qb < NQL: drain(L, qb, sOc, after=W[qb])
            return schedule(L, lat_lds=cfg.lat_lds, rate_scale=cfg.rate_scale)
        G = cfg.pos
        st = len(L); touch(L, 0); read_k(L, nt, 1)
        glue_split(L, st, -1, cfg.kbs, cfg.ksp)
        if dq is not None:
            st = len(L)
            for j in range(3): drain_rd(L, dq, j, DT[j])
            glue(L, st, G['drd'])
        for qb in range(NQ - cfg.ndefer, NQ): softmax_quad(L, cb, 1, qb)
        if qq is not None and qq < NQL and cfg.qswz:
            XT = [TM[0], TM[1], TA]
            for j in range(1, 4): L.append(I(f"v_xor_b32 v{XT[j-1]}, {64*j}, v{voffK}"))
        n = 0
        bar = None
        o1 = 0 if cfg.bar_late else 1
        AB = lambda: [bar] if bar is not None else []
        def refill(gk, gv, lk, lv):
            for which, t, g0 in (('K', i + lk, gk), ('V', i + lv, gv)):
                st = len(L); dma_kv(L, which, t % 16, t >= 16, after=[bar])
                if cfg.dma_pair: glue(L, st, g0)
                else:
                    tail = L[st + 3:]; del L[st + 3:]
                    glue(L, st, g0); st = len(L); L.extend(tail); glue(L, st, g0 + cfg.dma_sp)
        for kb in range(2):
            for qb in range(NQ):
                raw = (i == 15 and kb == 0)
                qk_chain(L, nb, kb, qb, cinit=not raw); n += 4
                if i == 15 and kb == 0: rowmax(L, nb, qb)
                if kb == 0 or qb < NQ - cfg.ndefer: softmax_quad(L, nb, kb, qb, raw=raw)
                if i == 14 and kb == 1: read_q(L, qb, mg=25 + 4 * qb + 10 + 4 * qb)
                if n == cfg.bar_pos:
                    if not cfg.bar_late:
                        bar = I("s_barrier", pin=True, waits=[('V', i), ('K', (i + 2) % 16)]); L.append(bar)
                        refill(G['dk'], G['dv'], 4, 3)
                    if qq is not None:
                        st = len(L)
                        ntq = ' nt' if cfg.nt_q else ''
                        if qq < NQL: L.append(I(f"s_add_u32 m0, s{sQw}, {qq*4096}"))
                        L.append(I(f"s_add_u32 s{sT2}, s{sQn}, {qq*4096}"))
                        for j in range(4):
                            if qq < NQL:
                                vo = XT[j-1] if (j and cfg.qswz) else voffK
                                L.append(I(f"buffer_load_dwordx4 v{vo}, s[{sQ}:{sQ+3}], s{sT2} offen offset:{1024*j}{ntq} lds", tag=('Q', qq)))
                            else:
                                L.append(I(f"buffer_load_dwordx4 {rng('a', QX[qq]+4*j, 4)}, v{vOst}, s[{sQ}:{sQ+3}], s{sT2} offen offset:{64*j}{ntq}"))
                        glue(L, st, G['dq'])
            if kb == 0:
                st = len(L); touch(L, 4)
                if dq is not None: drain_st(L, dq, 0, DT[0], sOb)
                read_v(L, i, 0, after=AB()); glue_split(L, st, 23 + o1, cfg.vbs, cfg.vsp)
                st = len(L)
                if dq is not None: drain_st(L, dq, 1, DT[1], sOb)
                read_v(L, i, 1, after=AB())
                if dq is not None: drain_rd(L, dq, 3, DT[0])
                glue_split(L, st, G['v1'], cfg.vbs, cfg.vsp)
        if i == 0 and variant != 'F':
            epilogue(L, range(cfg.epi_e15, 4), sOb, False)
        st = len(L); touch(L, 0)
        if dq is not None: drain_st(L, dq, 2, DT[2], sOb)
        read_v(L, i, 2, after=AB()); glue_split(L, st, 47 + o1, cfg.vbs, cfg.vsp)
        st = len(L)
        if dq is not None: drain_st(L, dq, 3, DT[0], sOb)
        read_v(L, i, 3, after=AB()); glue_split(L, st, G['v3'], cfg.vbs, cfg.vsp)
        msum(L, cb, i == 0)
        for db in range(8):
            pv_db(L, cb, db, i == 0)
            if db == 3:
                if cfg.bar_late:
                    bar = I("s_barrier", pin=True, waits=[('V', (i + 1) % 16), ('K', (i + 2) % 16), 'LDSALL']); L.append(bar)
                    st = len(L)
                else:
                    st = len(L); touch(L, 4)
                read_k(L, (i + 2) % 16, 0, after=[bar])
                glue_split(L, st, 48 + 6 + 24, cfg.kbs, cfg.ksp)
                if cfg.bar_late: refill(cfg.posl['dk'], cfg.posl['dv'], 5, 4)
        if i == 15:
            epilogue(L, range(0, cfg.epi_e15), sOc, True)
        return schedule(L, lat_lds=cfg.lat_lds, rate_scale=cfg.rate_scale)

    _iteration = iteration
    def stamp(slot_expr):
        return [I("s_memtime s[68:69]")] + [I(t) for t in slot_expr] + [I("s_waitcnt lgkmcnt(0)"), I("s_sub_u32 s68, s68, s64"),
                I(f"v_mov_b32 v{TM[0]}, s68"), I(f"buffer_store_dword v{TM[0]}, off, s[72:75], s70")]
    if cfg.stamps == 2:
        def iteration(i, variant=''):
            return stamp([f"s_lshl_b32 s70, s{sBlk}, 6", f"s_add_u32 s70, s70, s71", f"s_add_u32 s70, s70, {4*i}"]) + _iteration(i, variant)
    segs['it0F'] = iteration(0, 'F') + [I("s_branch L_it1")]
    for i in range(16):
        segs[f'it{i}'] = iteration(i)
    segs['it14'] += [I(f"s_cmp_eq_u32 s{sBlk}, 3"), I("s_cbranch_scc1 L_it15L")]
    adv = [f"s_mov_b32 s{sOb}, s{sOc}", f"s_mov_b32 s{sOc}, s{sQn}", f"s_mov_b32 s{sKVc}, s{sKVn}",
           f"s_add_u32 s{sBlk}, s{sBlk}, 1", f"s_lshl_b32 s{sBit}, s{sBit}, 1",
           f"s_add_u32 s{sKVn}, s{sKVn}, {16 << 17}", f"s_add_u32 s{sQn}, s{sQn}, {16*768*256}",
           f"s_cmp_eq_u32 s{sBlk}, 3",
           f"s_cselect_b32 s{sKVn}, 0x20000000, s{sKVn}", f"s_cselect_b32 s{sQn}, 0x20000000, s{sQn}",
           "s_branch L_it0"]
    segs['it15'] += [I(t) for t in adv]
    segs['it15L'] = iteration(15, 'L')

    path = ['pro', 'it0F'] + [f'it{i}' for i in range(1, 16)] + [f'it{i}' for i in range(16)] + \
           [f'it{i}' for i in range(15)] + ['it15L']
    st = WaitState(); reqs = {}
    for name in path:
        r = compute_waits(segs[name], st)
        reqs[name] = merge_req(reqs.get(name, {}), r)
    for name in reqs: segs[name] = insert_waits(segs[name], reqs[name])
    nn = 0
    for rep in range(2):
        for a, b in zip([None] + path[:-1], path):
            segs[b], k = fix_hazards(segs[b], history=segs[a][-30:] if a else ()); nn += k
    full = sum((segs[n] for n in path), [])
    bad = check_waits(full, WaitState()); assert not bad, bad[:5]
    bad = check_hazards(full); assert not bad, bad[:5]
    cnt = defaultdict(int)
    for i in range(16):
        for c in segs[f'it{i}']: cnt[c.kind] += 1
    print("per-block counts", dict(cnt), "nops inserted", nn, file=sys.stderr)

    out = [HEADER]
    T = lambda seg: [c.text for c in segs[seg] if c.kind != 'touch']
    out += T('pro') + T('it0F')
    out += [".p2align 6", "L_it0:"] + T('it0') + ["L_it1:"]
    for i in range(1, 16): out += [f"; ---- iteration {i}"] + T(f'it{i}')
    out += ["L_it15L:"] + T('it15L')
    fin = []
    if getattr(cfg, 'diag', None):
        fin += ["s_mov_b32 s50, 48", "L_diag:"]
        for j in range(32):
            if cfg.diag == 'nop': fin += ["s_nop 3"]
            elif cfg.diag == 'm16': fin += [f"{MF} v[{32+4*(j%16)}:{35+4*(j%16)}], a[{4*(j%8)}:{4*(j%8)+3}], a[{32+4*(j%24)}:{35+4*(j%24)}], v[{32+4*(j%16)}:{35+4*(j%16)}]"]
            elif cfg.diag == 'm32' and j % 2 == 0: fin += [f"v_mfma_f32_32x32x16_bf16 v[{32+16*((j//2)%4)}:{47+16*((j//2)%4)}], a[{4*(j%8)}:{4*(j%8)+3}], a[{32+4*(j%24)}:{35+4*(j%24)}], v[{32+16*((j//2)%4)}:{47+16*((j//2)%4)}]"]
        fin += ["s_sub_u32 s50, s50, 1", "s_cmp_lg_u32 s50, 0", "s_cbranch_scc1 L_diag", "s_nop 15"]
    if cfg.stamps: fin += ["s_waitcnt vmcnt(0) lgkmcnt(0)"]
    if cfg.stamps:
        fin += ["s_memtime s[68:69]", "s_memrealtime s[70:71]", "s_waitcnt lgkmcnt(0)",
                "s_sub_u32 s68, s68, s64", "s_sub_u32 s70, s70, s66",
                f"s_lshl_b32 s3, s{sWave}, 4", "s_lshl_b32 s71, s2, 8", "s_add_u32 s3, s3, s71"] + \
               (["s_mul_i32 s3, s2, 193", "s_lshr_b32 s71, s3, 14", "s_mul_i32 s3, s71, 85", "s_sub_u32 s3, s2, s3", f"s_or_b32 s3, s3, s{sWave}",
                 "s_lshl_b32 s3, s3, 8", "s_lshl_b32 s71, s71, 4", "s_add_u32 s3, s3, s71"] if cfg.stamps == 3 else []) + \
               ["v_mov_b32 v36, s68", "v_mov_b32 v37, s70", "v_mov_b32 v38, s66", f"v_mov_b32 v39, s{78 if cfg.stamps == 3 else sFlag}",
                "buffer_store_dwordx4 v[36:39], off, s[72:75], s3", "s_waitcnt vmcnt(0)"]
    out += fin
    out += [f"s_cmp_lg_u32 s{sFlag}, 0", "s_cbranch_scc1 L_redo", "L_end:", "s_endpgm", "L_main_end:"]
    def lin(L):
        st = WaitState()
        L = insert_waits(L, compute_waits(L, st))
        L, _ = fix_hazards(L)
        return [c.text for c in L if c.kind != 'touch'] + ["s_waitcnt vmcnt(0) lgkmcnt(0)", "s_nop 15"]
    RB = 40960
    R = []
    A = lambda t, **k: R.append(I(t, **k))
    assert KS + VS <= NQL * 4096
    A("s_waitcnt vmcnt(0) lgkmcnt(0)")
    A(f"s_mov_b32 s{sRb}, s{sQw}")
    A(f"v_add_u32 v{vKrd}, s{sRb}, v{vKrd}")
    A(f"s_add_u32 s{sT}, s{sRb}, {KS - VB0 + (1 << 32) if KS < VB0 else KS - VB0}")
    for e in range(4): A(f"v_add_u32 v{vVrd[e]}, s{sT}, v{vVrd[e]}")
    out += ["s_nop 15", "L_redo:"] + lin(R)
    out += ["L_redo_blk:", f"s_and_b32 s{sT}, s{sFlag}, 1", "s_cbranch_scc0 L_redo_next"]
    def rdma(L, which):
        srd, voff, base, PIT = (sK, voffK, 0, KP) if which == 'K' else (sV, voffV, KS, VP)
        for a in range(8):
            L.append(I(f"s_add_u32 m0, s{sRb}, {base + a*PIT}"))
            L.append(I(f"s_add_u32 s{sT}, s{sRk}, {a*1024}"))
            L.append(I(f"buffer_load_dwordx4 v{voff}, s[{srd}:{srd+3}], s{sT} offen lds", tag='R'))
    def rread_k(L):
        for f in range(8):
            L.append(I(f"ds_read_b128 {rng('a', FR[f], 4)}, v{vKrd} offset:{(f//4)*4*KP + 64*(f%4)}", waits=['R'] if f == 0 else None))
    MX = [SA[1][0] + q for q in range(NQ)]
    R = []
    for qb in range(NQ):
        A(f"s_add_u32 s{sT2}, s{sO0}, {qb*4096}")
        for j in range(4): A(f"buffer_load_dwordx4 {rng('a', Q[qb]+4*j, 4)}, v{vOst}, s[{sQ}:{sQ+3}], s{sT2} offen offset:{64*j}")
        A(f"v_mov_b32 v{MX[qb]}, 0xff800000")
        f, b = O[qb]
        for r in range(32): A(f"v_mov_b32 v{b+r}, 0" if f == 'v' else f"v_accvgpr_write_b32 a{b+r}, 0")
        for r in range(4): A(f"v_accvgpr_write_b32 a{LS[qb]+r}, 0")
    A(f"s_mov_b32 s{sRk}, s{sKV0}"); A(f"s_mov_b32 s{sRt}, 16")
    out += lin(R) + ["L_redo_p1:"]
    R = []
    rdma(R, 'K'); rread_k(R)
    for kb in range(2):
        for qb in range(NQ):
            qk_chain(R, 0, kb, qb, cinit=False)
    for qb in range(NQ):
        for kb in range(2):
            b = SQ(0, kb, qb)
            for r in range(0, 4, 2): A(f"v_max3_f32 v{MX[qb]}, v{MX[qb]}, v{b+r}, v{b+r+1}")
    A(f"s_add_u32 s{sRk}, s{sRk}, 8192"); A(f"s_sub_u32 s{sRt}, s{sRt}, 1")
    out += lin(R) + [f"s_cmp_lg_u32 s{sRt}, 0", "s_cbranch_scc1 L_redo_p1"]
    R = []
    for qb in range(NQ):
        t, u = MX[qb], TM[1]
        for sw in ("v_permlane32_swap_b32", "v_permlane16_swap_b32"):
            A(f"v_mov_b32 v{u}, v{t}"); A(f"{sw} v{t}, v{u}"); A(f"v_max_f32 v{t}, v{t}, v{u}")
        for r in range(4): A(f"v_sub_f32 v{NEGM[qb]+r}, 0, v{t}")
    A(f"s_mov_b32 s{sRk}, s{sKV0}"); A(f"s_mov_b32 s{sRt}, 16")
    out += lin(R) + ["L_redo_p2:"]
    R = []
    rdma(R, 'K'); rdma(R, 'V'); rread_k(R)
    for kb in range(2):
        for qb in range(NQ):
            qk_chain(R, 0, kb, qb)
    for kb in range(2):
        for qb in range(NQ): softmax_quad(R, 0, kb, qb)
    for db in range(8):
        for u in range(2):
            A(f"ds_read_b64_tr_b16 {rng('a', FR[db] + 2*u, 2)}, v{vVrd[db//2]} offset:{u*4*VP + 8*(db%2)}")
    msum(R, 0, False)
    for db in range(8): pv_db(R, 0, db, False)
    A(f"s_add_u32 s{sRk}, s{sRk}, 8192"); A(f"s_sub_u32 s{sRt}, s{sRt}, 1")
    out += lin(R) + [f"s_cmp_lg_u32 s{sRt}, 0", "s_cbranch_scc1 L_redo_p2"]
    R = []
    for qb in range(NQ):
        epi_rinv(R, qb, False)
        for e in range(4): epi_unit(R, qb, e, sO0, direct=True)
    out += lin(R)
    out += ["L_redo_next:", f"s_add_u32 s{sKV0}, s{sKV0}, {16 << 17}", f"s_add_u32 s{sO0}, s{sO0}, {16*768*256}",
            f"s_lshr_b32 s{sFlag}, s{sFlag}, 1", f"s_cmp_lg_u32 s{sFlag}, 0", "s_cbranch_scc1 L_redo_blk", "s_endpgm", KD]
    return "\n".join(out) + "\n"

if __name__ == "__main__":
    cfg = Cfg()
    for a in sys.argv[2:]:
        k, v = a.split('='); setattr(cfg, k, eval(v))
    print(build(cfg), file=open(sys.argv[1], 'w'), end='')
```

```python
from gen_mfma import *
B3 = [EXP, ADD, CVT]
DOT = "v_dot2_f32_bf16 %d, %s, s40, 0 op_sel:[0,0,0] op_sel_hi:[0,1,0]"
DOTV = "v_dot2_f32_bf16 %d, %s, %t, 0 op_sel:[1,0,0] op_sel_hi:[1,1,0]"
AW = "v_accvgpr_write_b32 a127, %s"
AR = "v_accvgpr_read_b32 %d, a126"
MUL = "v_mul_f32 %d, s40, %s"
CB = "v_cvt_f32_bf16 %d, %s"
cfgs = {
  "w_base": [B3], "w_dot": [B3 + [DOT]], "w_dotv": [B3 + [DOTV]], "w_aw": [B3 + [AW]], "w_ar": [B3 + [AR]], "w_mul": [B3 + [MUL]], "w_cb": [B3 + [CB]],
}
for k, f in cfgs.items():
    t = gen(16, f, 192).replace("s_barrier\n", "s_barrier\ns_mov_b32 s40, 0x3b253e02\n", 1)
    open(f"mb/{k}.s", "w").write(t)
```
